```python
import torch

def _softmax(x, axis=-1):
    return torch.softmax(x, dim=axis)
def _gelu(x):
    return torch.nn.functional.gelu(x, approximate="tanh")
def _silu(x):
    return torch.nn.functional.silu(x)
def _sigmoid(x):
    return torch.sigmoid(x)
def _layernorm(x, axis=-1, eps=1e-5):
    m = x.mean(dim=axis, keepdim=True)
    v = x.var(dim=axis, keepdim=True, unbiased=False)
    return (x - m) / torch.sqrt(v + eps)
def _scatter_add(tgt, idx, src, axis=0):
    return tgt.clone().index_add_(axis, idx, src)
def _segment_sum(src, seg, n):
    out = torch.zeros((n,) + src.shape[1:], dtype=src.dtype)
    return out.index_add_(0, seg, src)
def _pad(x, pw):
    flat = tuple(v for pair in reversed(pw) for v in pair)
    return torch.nn.functional.pad(x, flat)

kernel_name = 'standalone__mha_softmax__near_ridge'

def setup_inputs():

    _w = (lambda a: (lambda t: t.to(torch.bfloat16) if t.is_floating_point() else t)(torch.as_tensor(a)))
    B, H, Sq, Sk, D = 8, 32, 608, 512, 128
    return {
        "q": _w((lambda *s: torch.randn(*s, dtype=torch.bfloat16) * 0.8)(B, H, Sq, D)),
        "k": _w((lambda *s: torch.randn(*s, dtype=torch.bfloat16) * 0.8)(B, H, Sk, D)),
        "v": _w((lambda *s: torch.randn(*s, dtype=torch.bfloat16) * 0.05)(B, H, Sk, D)),
    }

def reference(q, k, v):
    scale = q.shape[-1] ** -0.5
    scores = torch.einsum("bhqd,bhkd->bhqk", q, k) * scale
    p = _softmax(scores, axis=-1)
    return torch.einsum("bhqk,bhkd->bhqd", p, v)
```

```python
import sys, re, struct, math

KN = "standalone__mha_softmax__near_ridge_kernel"

vTID = 0
vQO = 1
vDK, vDV = 2, 3
vKA = [4, 5, 6]
vVA = [7, 8, 9]
vR = 10
vS = 16
vP = 32
vT = 40
vO1 = 64
vQ1 = 160
aO1 = 0
aK = 96
aV = 128
aQ2 = 160
aL = 224
aONE = 248

sQ, sK, sV, sO = 16, 20, 24, 28
sW4K = 32
sTMP = 33
sC = 34
sMASK = 35
sLO, sRNG = 38, 39
sFLAG = 40
sROW = 44
sUNIT = 56

C_SCALE = struct.unpack("<I", struct.pack("<f", math.log2(math.e) / math.sqrt(128.0)))[0]
L_LO = (127 - 40) << 23
L_HI = (127 + 60) << 23

NT1, NT2 = 6, 4
NITEM = 16 * NT1 + 16 * NT2
J2 = 16 * NT1


def item(i):
    if i < J2:
        return 0, i // NT1, i % NT1
    return 1, 16 + (i - J2) // NT2, (i - J2) % NT2


def first(t):
    return t * NT1 if t <= 16 else J2 + (t - 16) * NT2


def unit_of(t):
    return t if t < 16 else (t - 10 if t < 26 else t - 26)


def r(cls, lo, n=1):
    return f"{cls}{lo}" if n == 1 else f"{cls}[{lo}:{lo+n-1}]"


def Qreg(job, j, ks):
    return r("v", vQ1 + 16 * j + 4 * ks, 4) if job == 0 else r("a", aQ2 + 16 * j + 4 * ks, 4)


def Obase(job, j):
    if job == 0:
        return ("v", vO1 + 32 * j) if j < 3 else ("a", aO1 + 32 * (j - 3))
    return ("v", vQ1 + 32 * j) if j < 3 else ("v", vO1)


class Gap:
    def __init__(self, mfma, slot, g):
        self.mfma = mfma
        self.slot, self.g = slot, g
        self.s, self.m, self.v = [], [], []
        self.units = 0
        self.pre = []
        self.locked = False

    def free_v(self):
        return 0 if self.locked else min(2 - self.units, 3 - self.units - len(self.s))

    def free_s(self):
        return 0 if self.locked else (3 - self.units - len(self.s) if self.s else 1)


class Gen:
    def __init__(self, opt):
        self.o = dict(ldflag="nt", qflag="nt", stflag="", reflag="nt", stamps=False, prefetch=True,
                      q2pos=(4, 7, 9, 12), init_last=6, slow=True)
        self.o.update(opt)
        self.gaps = []
        self.idx = {}

    def build_gaps(self):
        M = "v_mfma_f32_16x16x32_bf16"
        for s in range(-1, NITEM + 1):
            if s + 1 < NITEM:
                job, t, j = item(s + 1)
                S = vS + 8 * ((s + 1) & 1)
                for f in range(8):
                    kb, ks = f >> 2, f & 3
                    d = r("v", S + 4 * kb, 4)
                    c = "0" if ks == 0 else d
                    self.add(f"{M} {d}, {r('a', aK+4*f, 4)}, {Qreg(job, j, ks)}, {c}", s, f)
            if s - 1 >= 0:
                job, t, j = item(s - 1)
                P = r("v", vP + 4 * ((s - 1) & 1), 4)
                cls, ob = Obase(job, j)
                z = t in (0, 16)
                for f in range(8):
                    d = r(cls, ob + 4 * f, 4)
                    self.add(f"{M} {d}, {r('a', aV+4*f, 4)}, {P}, {'0' if z else d}", s, 8 + f)
                d = r("a", aL + 4 * j, 4)
                self.add(f"{M} {d}, {r('a', aONE, 4)}, {P}, {'0' if z else d}", s, 16)
        self.add(None, NITEM + 1, 0)

    def add(self, mfma, slot, g):
        self.idx[(slot, g)] = len(self.gaps)
        self.gaps.append(Gap(mfma, slot, g))

    def at(self, slot, g):
        while (slot, g) not in self.idx:
            g += 1
            if g > 16:
                slot, g = slot + 1, 0
        return self.idx[(slot, g)]

    def place(self, text, kind, units, lo, hi=None, what=""):
        n = len(self.gaps) - 1
        k = lo
        while True:
            gp = self.gaps[k]
            if k == n:
                break
            if kind == "s":
                if gp.free_s() >= 1:
                    break
            elif gp.free_v() >= units:
                break
            k += 1
        if hi is not None and k > hi:
            raise Exception(f"deadline miss {what or text}: lo={lo} hi={hi} got {k}")
        if k == n:
            gp.v.append(text)
        elif kind == "s":
            gp.s.append(text)
        else:
            (gp.m if kind == "m" else gp.v).append(text)
            gp.units += units
        return k

    def stream(self, ops, lo, hi=None, what=""):
        k = lo
        prevkind = None
        rank = {"s": 0, "m": 1, "v": 2}
        for text, kind, units, sep in ops:
            start = k + sep
            if prevkind is not None and sep == 0 and rank[kind] < rank[prevkind]:
                start = k + 1
            start = min(start, len(self.gaps) - 1)
            k = self.place(text, kind, units, start, hi, what)
            prevkind = kind
        return k

    def place_softmax(self):
        for i in range(NITEM):
            S = vS + 8 * (i & 1)
            P = vP + 4 * (i & 1)
            lo = self.at(i, 0)
            if i == 0 or i == NITEM - 1:
                ops = []
                for e in range(8):
                    ops.append((f"v_exp_f32 v{S+e}, v{S+e}", "v", 2, 0))
                    if e & 1:
                        ops.append((f"v_cvt_pk_bf16_f32 v{P+e//2}, v{S+e-1}, v{S+e}", "v", 1, 1))
                if i == 0:
                    self.sm0 = [x[0] for x in ops if "exp" in x[0]] + ["s_nop 0"] + [x[0] for x in ops if "cvt" in x[0]]
                else:
                    self.smlast = [x[0] for x in ops]
                continue
            for e in range(8):
                k = self.idx[(i, 2 * e)]
                self.place(f"v_exp_f32 v{S+e}, v{S+e}", "v", 2, k, k)
                if e & 1:
                    k = self.idx[(i, 2 * e + 1)]
                    self.place(f"v_cvt_pk_bf16_f32 v{P+e//2}, v{S+e-1}, v{S+e}", "v", 1, k, k)

    def kread(self, t, f):
        sl = t % 10
        kb, ks = f >> 2, f & 3
        return f"ds_read_b128 {r('a', aK+4*f, 4)}, v{vKA[sl//4]} offset:{(sl%4)*16384 + kb*8192 + ks*256}"

    def vread(self, t, f, h):
        sl = t % 10
        u, e = f >> 1, f & 1
        return f"ds_read_b64_tr_b16 {r('a', aV+4*f+2*h, 2)}, v{vVA[sl//4]} offset:{(sl%4)*16384 + h*8192 + u*256 + e*8}"

    def place_reads(self):
        self.need = {}
        for t in range(1, 32):
            s = first(t) - 2
            for f in range(8):
                lo = self.idx[(s, f)]
                use = self.idx[(s + 1, f)]
                txt = self.kread(t, f)
                self.place(txt, "m", 1, lo, use - 5, "kread")
                self.need.setdefault(use, []).append(txt)
        for t in range(0, 32):
            s = first(t)
            for f in range(8):
                use = self.idx[(s + 1, 8 + f)]
                lo = self.idx[(s, 8 + f)] if t > 0 else self.idx[(1, 0)]
                for h in range(2):
                    txt = self.vread(t, f, h)
                    if t == 0:
                        self.v0reads.append(txt)
                    else:
                        self.place(txt, "m", 1, lo, use - 5, "vread")
                        self.need.setdefault(use, []).append(txt)

    def dma(self, t, which):
        u = unit_of(t)
        fl = self.o["ldflag"] if t < 16 else self.o["reflag"]
        if t < 6 and self.o.get("keepflag") is not None:
            fl = self.o["keepflag"]
        out = []
        if "k" in which:
            out += [f"buffer_load_dwordx4 v{vDK}, s[{sK}:{sK+3}], s{sUNIT+u} offen offset:{o} {fl} lds ; K{t}" for o in (0, 1024)]
        if "v" in which:
            out += [f"buffer_load_dwordx4 v{vDV}, s[{sV}:{sV+3}], s{sUNIT+u} offen offset:{o} {fl} lds ; V{t}" for o in (2048, 3072)]
        return out

    def m0(self, t):
        return f"s_add_u32 m0, s{sW4K}, {(t % 10) * 16384}"

    def qload(self, job, j):
        return [f"buffer_load_dwordx4 {Qreg(job, j, ks)}, v{vQO}, s[{sQ}:{sQ+3}], s{sROW + job*NT1 + j} offen offset:{ks*64} {self.o['qflag']} ; Q{job}_{j}"
                for ks in range(4)]

    def scale_v(self, j):
        out = []
        for k in range(16):
            q = vQ1 + 16 * j + k
            a, b = vT + 2 * (k & 1), vT + 2 * (k & 1) + 1
            out += [f"v_lshlrev_b32 v{a}, 16, v{q}", f"v_and_b32 v{b}, s{sMASK}, v{q}",
                    f"v_mul_f32 v{a}, s{sC}, v{a}", f"v_mul_f32 v{b}, s{sC}, v{b}",
                    f"v_cvt_pk_bf16_f32 v{q}, v{a}, v{b}"]
        return out

    def scale_a(self, j):
        out = []
        for k in range(16):
            q = aQ2 + 16 * j + k
            a, b = vT, vT + 1
            out += [f"v_accvgpr_read_b32 v{b}, a{q}", f"v_lshlrev_b32 v{a}, 16, v{b}", f"v_and_b32 v{b}, s{sMASK}, v{b}",
                    f"v_mul_f32 v{a}, s{sC}, v{a}", f"v_mul_f32 v{b}, s{sC}, v{b}",
                    f"v_cvt_pk_bf16_f32 v{a}, v{a}, v{b}", f"v_accvgpr_write_b32 a{q}, v{a}"]
        return [(x, "v", 1, 0) for x in out]

    def lsum_ops(self, j):
        R = vR + j
        t = vT + 2
        return [(f"v_accvgpr_read_b32 v{R}, a{aL+4*j}", "v", 1, 0),
                (f"v_subrev_u32 v{t}, s{sLO}, v{R}", "v", 1, 0),
                (f"v_cmp_lt_u32 vcc, s{sRNG}, v{t}", "v", 1, 0),
                (f"v_rcp_f32 v{R}, v{R}", "v", 2, 0),
                (f"s_or_b64 s[{sFLAG}:{sFLAG+1}], s[{sFLAG}:{sFLAG+1}], vcc", "s", 0, 1)]

    def drain_ops(self, job, j):
        cls, ob = Obase(job, j)
        R = vR + j
        ops = []
        for u in range(4):
            if cls == "v":
                b = ob + 8 * u
            else:
                b = vT + 8 + 8 * (u & 1)
                for k in range(8):
                    ops.append((f"v_accvgpr_read_b32 v{b+k}, a{ob+8*u+k}", "v", 1, 0))
            for k in range(8):
                ops.append((f"v_mul_f32 v{b+k}, v{R}, v{b+k}", "v", 1, 0))
            for k in range(4):
                ops.append((f"v_cvt_pk_bf16_f32 v{b+k}, v{b+2*k}, v{b+2*k+1}", "v", 1, 0))
            ops.append((f"buffer_store_dwordx4 {r('v', b, 4)}, v{vQO}, s[{sO}:{sO+3}], s{sROW + job*NT1 + j} offen offset:{u*64} {self.o['stflag']} ; O{job}_{j}", "m", 2, 1))
        return ops

    def barrier_gap(self, t):
        return self.at(first(t) - 3, 16)

    def schedule(self):
        o = self.o
        self.v0reads = []
        self.build_gaps()
        G = self.gaps
        self.bars = {}
        bar_ts = list(range(1, 16)) + [19, 22, 26, 29]
        for t in bar_ts:
            k = self.barrier_gap(t)
            self.bars[t] = k
            tag = {26: "V28", 29: "V31"}.get(t, f"V{t}" if t < 16 else None)
            G[k].s.append(f"@VMWAIT {tag}" if tag else "s_nop 0")
            G[k].s.append("s_barrier")
            G[k].locked = True
        self.place_softmax()
        self.place_reads()
        G[self.idx[(-1, 0)]].pre += (["@VMWAIT Q0_0"] + self.scale_v(0) + ["@VMWAIT K0", "s_barrier"] +
                                     [self.kread(0, f) for f in range(8)] + ["s_waitcnt lgkmcnt(0)"])
        G[self.idx[(0, 0)]].pre += ["@VMWAIT Q0_1"] + self.scale_v(1) + ["s_nop 1"]
        G[self.idx[(1, 0)]].pre += (self.sm0 + ["@VMWAIT V0", "s_barrier"] + self.v0reads +
                                    ["@VMWAIT Q0_2"] + self.scale_v(2) + ["s_waitcnt lgkmcnt(0)"])
        for j in range(3, NT1):
            G[self.idx[(j - 1, 0)]].pre += [f"@VMWAIT Q0_{j}"] + self.scale_v(j) + ["s_nop 1"]
        self.insert_lgkm_waits()
        q2 = {p: n for n, p in enumerate(o["q2pos"])}
        groups = []
        for t in range(2, 16):
            if t in q2:
                groups.append(("q", q2[t]))
            groups.append(("u", t))
        init, later = [], []
        for gq in groups:
            last = o["init_last"]
            isinit = (gq[0] == "u" and gq[1] <= last) or (gq[0] == "q" and o["q2pos"][gq[1]] <= last)
            (init if isinit else later).append(gq)
        self.init_groups = init
        k = self.idx[(first(1), 0)]
        pace = o.get("pace", 4)
        for n, gq in enumerate(later):
            lo = max(k + 1, self.at(first(1) + n * pace, 0))
            if gq[0] == "u":
                t = gq[1]
                if t >= 10:
                    lo = max(lo, self.bars[t - 9] + 1)
                ops = [(self.m0(t), "s", 0, 0)] + [(x, "m", 2, 1) for x in self.dma(t, "kv")]
            else:
                ops = [(x, "m", 2, 1) for x in self.qload(1, gq[1])]
            k = self.stream(ops, lo, what=str(gq))
        for bt, ts in ((19, (26, 27, 28)), (22, (29, 30, 31))):
            k = self.bars[bt] + 1
            for t in ts:
                ops = [(self.m0(t), "s", 0, 0)] + [(x, "m", 2, 1) for x in self.dma(t, "kv")]
                k = self.stream(ops, k, what=f"re{t}") + 1
        k = 0
        for n in range(NT2):
            lo = max(k, self.bars[o["q2pos"][n]] + 1)
            hi = self.idx[(J2 + n - 1, 0)] - 2
            k = self.stream(self.scale_a(n), lo, hi, f"scale{n}")
        self.scale_end = k
        lend = {}
        k = 0
        for j in range(NT1):
            fin = self.idx[(first(15) + j + 1, 16)]
            hi = self.idx[(first(16) + j + 1, 16)] - 2 if j < NT2 else None
            k = self.stream(self.lsum_ops(j)[:1], max(k, fin + 5), hi, "lsum")
            lend[j] = k
        k = 0
        for j in range(NT1):
            hi = self.idx[(J2 + 3 + 1, 8)] - 2 if j == 0 else None
            k = self.stream(self.lsum_ops(j)[1:], max(k, lend[j]), hi, f"lrest{j}")
            k = self.stream(self.drain_ops(0, j), k, hi, f"drain{j}")
        self.drain1_end = k
        kk = self.at(NITEM - 1, 0)
        ops = []
        S = vS + 8 * ((NITEM - 1) & 1)
        for x in self.smlast:
            ops.append((x, "v", 2 if "exp" in x else 1, 0 if "exp" in x else 1))
        placed = 0
        lastg = self.idx[(NITEM, 8)]
        rest = []
        kcur = kk
        for op in ops:
            ok = False
            if not rest:
                kt = kcur + op[3]
                while kt < lastg and G[kt].free_v() < op[2]:
                    kt += 1
                if kt < lastg:
                    self.place(op[0], "v", op[2], kt, kt)
                    kcur = kt
                    ok = True
            if not ok:
                rest.append(op[0])
        G[lastg].pre += [x for x in rest if "exp" in x] + ["s_nop 0"] + [x for x in rest if "cvt" in x] + ["s_nop 1"]
        k = max(k, 0)
        for j in range(NT2):
            fin = self.idx[(first(31) + j + 1, 16)]
            if j == NT2 - 1:
                self.gaps[-1].v.append("s_nop 7")
                lo = len(G) - 1
            else:
                lo = fin + 5
            k = self.stream(self.lsum_ops(j), max(k, min(lo, len(G) - 1)), None, "lsum2")
            if k == len(G) - 1:
                self.gaps[-1].v.append("s_nop 0")
            k = self.stream(self.drain_ops(1, j), min(k + 1, len(G) - 1), None, "drain2")

    def insert_lgkm_waits(self):
        G = self.gaps
        issued = []
        done = 0
        for k, gp in enumerate(G):
            for x in gp.pre:
                if x.startswith("ds_"):
                    issued.append(x)
                if x.startswith("s_waitcnt lgkmcnt(0)"):
                    done = len(issued)
            nd = self.need.get(k + 1, [])
            if nd:
                pos = max(len(issued) - 1 - issued[::-1].index(x) for x in nd)
                if pos >= done:
                    n = len(issued) - 1 - pos
                    assert n <= 15
                    w = f"s_waitcnt lgkmcnt({n})"
                    if gp.locked:
                        gp.s.insert(0, w)
                    else:
                        if gp.free_s() < 1:
                            print(f"; note: gap {gp.slot},{gp.g} overfull by lgkm wait", file=sys.stderr)
                        gp.s.insert(0, w)
                    done = pos + 1
            for x in gp.m:
                if x.startswith("ds_"):
                    issued.append(x)

    def prologue(self):
        o = self.o
        L = []
        a = L.append
        if o["stamps"]:
            a("s_memrealtime s[90:91]"); a("s_memtime s[92:93]")
        a("s_cmp_ge_u32 s2, 256")
        a("s_cbranch_scc1 L_exit")
        a("s_load_dwordx8 s[4:11], s[0:1], 0")
        if o["stamps"]:
            a("s_load_dwordx4 s[12:15], s[0:1], 32")
        a(f"v_lshrrev_b32 v10, 6, v0              ; wave")
        a(f"v_and_b32 v11, 63, v0                 ; lane")
        a(f"v_readfirstlane_b32 s{sTMP}, v10")
        a(f"v_and_b32 v12, 15, v0                 ; i")
        a(f"v_lshrrev_b32 v13, 4, v11             ; g")
        a(f"v_and_b32 v14, 3, v0                  ; lane&3")
        a(f"v_bfe_u32 v15, v0, 2, 2               ; (lane>>2)&3")
        a(f"s_lshl_b32 s{sW4K}, s{sTMP}, 12")
        a(f"v_lshlrev_b32 v{vQO}, 8, v12")
        a(f"v_lshl_add_u32 v{vQO}, v13, 4, v{vQO}")
        a(f"v_lshl_add_u32 v{vQO}, v10, 12, v{vQO}")
        a(f"v_lshlrev_b32 v16, 1, v10")
        a(f"v_and_b32 v16, 2, v16")
        a(f"v_xor_b32 v16, v16, v15")
        a(f"v_lshlrev_b32 v17, 11, v10")
        a(f"v_lshl_add_u32 v17, v13, 6, v17       ; w*2048 + g*64")
        a(f"v_lshl_add_u32 v{vDK}, v14, 8, v17")
        a(f"v_lshl_add_u32 v{vDK}, v16, 4, v{vDK}")
        a(f"v_lshl_add_u32 v{vDV}, v15, 8, v17")
        a(f"v_lshl_add_u32 v{vDV}, v14, 4, v{vDV}")
        a(f"s_mul_i32 s{sTMP}, s2, 155648")
        a(f"s_lshl_b32 s3, s2, 17")
        a(f"s_mov_b32 s{sK+2}, 131072")
        a(f"s_mov_b32 s{sK+3}, 0x20000")
        a(f"s_mov_b32 s{sQ+2}, 155648")
        a(f"s_mov_b32 s{sQ+3}, 0x20000")
        a(f"s_mov_b32 s{sV+2}, {131072+2048}")
        a(f"s_mov_b32 s{sV+3}, 0x20000")
        a(f"s_mov_b32 s{sO+2}, 155648")
        a(f"s_mov_b32 s{sO+3}, 0x20000")
        for u in range(16):
            a(f"s_mov_b32 s{sUNIT+u}, {u*8192}")
        for j in range(NT1 + NT2):
            a(f"s_mov_b32 s{sROW+j}, {j*16384}")
        if o["prefetch"]:
            a("s_getpc_b64 s[72:73]")
            a("L_pc:")
            a("s_lshr_b32 s74, s2, 3")
            a("s_and_b32 s74, s74, 31")
            a("s_lshl_b32 s74, s74, 11")
            a("v_lshlrev_b32 v18, 9, v10")
            a("v_lshl_add_u32 v18, v14, 7, v18")
            a("v_add_u32 v18, s74, v18")
            a("v_min_u32 v18, L_codeend-L_pc-4, v18")
            a(f"global_load_dword v{vT+23}, v18, s[72:73] ; PF")
        a(self.m0(0))
        a("s_waitcnt lgkmcnt(0)")
        a(f"s_add_u32 s{sK}, s6, s3")
        a(f"s_addc_u32 s{sK+1}, s7, 0")
        a(f"s_add_u32 s{sQ}, s4, s{sTMP}")
        a(f"s_addc_u32 s{sQ+1}, s5, 0")
        L += self.dma(0, "k")
        L += self.qload(0, 0)
        a(f"s_add_u32 s{sV}, s8, s3")
        a(f"s_addc_u32 s{sV+1}, s9, 0")
        a(f"s_sub_u32 s{sV}, s{sV}, 2048")
        a(f"s_subb_u32 s{sV+1}, s{sV+1}, 0")
        a(f"s_add_u32 s{sO}, s10, s{sTMP}")
        a(f"s_addc_u32 s{sO+1}, s11, 0")
        L += self.qload(0, 1) + self.dma(0, "v")
        for j in (2, 3, 4):
            L += self.qload(0, j)
        a(self.m0(1))
        a("s_nop 0")
        L += self.dma(1, "k") + self.qload(0, 5) + self.dma(1, "v")
        for gq in self.init_groups:
            if gq[0] == "u":
                a(self.m0(gq[1]))
                a("s_nop 0")
                L += self.dma(gq[1], "kv")
            else:
                L += self.qload(1, gq[1])
        a(f"v_lshrrev_b32 v16, 1, v15")
        a(f"v_and_b32 v17, 1, v15")
        a(f"v_lshlrev_b32 v18, 12, v16")
        a(f"v_lshl_add_u32 v18, v17, 10, v18")
        a(f"v_and_b32 v16, 2, v15")
        a(f"v_xor_b32 v16, v16, v13")
        a(f"v_lshl_add_u32 v18, v16, 6, v18")
        a(f"v_lshl_add_u32 v{vKA[0]}, v14, 4, v18")
        a(f"v_add_u32 v{vKA[1]}, 0x10000, v{vKA[0]}")
        a(f"v_add_u32 v{vKA[2]}, 0x20000, v{vKA[0]}")
        a(f"v_lshrrev_b32 v16, 1, v13")
        a(f"v_and_b32 v17, 1, v13")
        a(f"v_lshlrev_b32 v18, 12, v16")
        a(f"v_lshl_add_u32 v18, v17, 10, v18")
        a(f"v_lshl_add_u32 v18, v12, 4, v18      ; (i>>2)*64+(i&3)*16 = i*16")
        a(f"v_add_u32 v{vVA[0]}, 2048, v18")
        a(f"v_add_u32 v{vVA[1]}, 0x10000, v{vVA[0]}")
        a(f"v_add_u32 v{vVA[2]}, 0x20000, v{vVA[0]}")
        a(f"v_mov_b32 v16, 0x3f803f80")
        for k in range(4):
            a(f"v_accvgpr_write_b32 a{aONE+k}, v16")
        a(f"s_mov_b32 s{sC}, {C_SCALE:#x}")
        a(f"s_mov_b32 s{sMASK}, 0xffff0000")
        a(f"s_mov_b32 s{sLO}, {L_LO:#x}")
        a(f"s_mov_b32 s{sRNG}, {L_HI-L_LO:#x}")
        a(f"s_mov_b64 s[{sFLAG}:{sFLAG+1}], 0")
        return L

    def linear(self):
        L = self.prologue()
        st = self.o["stamps"]
        for k, gp in enumerate(self.gaps):
            if st and k == self.idx[(4, 0)]:
                L += gp.pre + ["s_memrealtime s[84:85]", "s_memtime s[86:87]"]
            elif st and k == self.idx[(J2, 0)]:
                L += gp.pre + ["s_memrealtime s[82:83]"]
            elif st and gp.mfma is None:
                L += gp.pre + ["s_memrealtime s[88:89]", "s_memtime s[80:81]"]
            else:
                L += gp.pre
            if gp.mfma:
                if gp.g == 0 or (gp.slot >= NITEM - 1 and gp.g == 8):
                    L.append(f"; ---- slot {gp.slot}")
                L.append(gp.mfma)
            L += gp.s + gp.m + gp.v
        out = []
        vm = []
        done = 0
        self.maxout = 0
        for x in L:
            if x.startswith("@VMWAIT"):
                tag = x.split()[1]
                pos = max(n for n, y in enumerate(vm) if y == tag)
                n = len(vm) - 1 - pos
                assert n <= 63, (tag, n)
                if pos >= done:
                    done = pos + 1
                out.append(f"s_waitcnt vmcnt({n})")
                continue
            if x.startswith(("buffer_", "global_")):
                vm.append(x.split(";")[-1].strip())
                self.maxout = max(self.maxout, len(vm) - done)
            out.append(x)
        return out

    def slow_path(self):
        L = []
        a = L.append
        M = "v_mfma_f32_16x16x32_bf16"
        a("L_slow:")
        a("s_waitcnt vmcnt(0)")
        a("v_and_b32 v12, 15, v0")
        a("v_bfe_u32 v13, v0, 4, 2")
        a("v_lshlrev_b32 v2, 8, v12")
        a("v_lshl_add_u32 v2, v13, 4, v2           ; K offset")
        a("v_lshlrev_b32 v3, 1, v12")
        a("v_lshl_add_u32 v3, v13, 10, v3")
        a("v_add_u32 v3, 2048, v3")
        a("v_lshlrev_b32 v4, 8, v12")
        a("v_lshl_add_u32 v4, v13, 3, v4")
        a(f"v_add_u32 v4, s{sW4K}, v4")
        a("s_mov_b32 s76, 0")
        a("L_slow_sub:")
        for ks in range(4):
            a(f"buffer_load_dwordx4 v[{64+4*ks}:{67+4*ks}], v{vQO}, s[{sQ}:{sQ+3}], s76 offen offset:{ks*64}")
        a("v_mov_b32 v5, 0xff800000")
        a("s_mov_b32 s77, 0")
        a("L_slow_max:")
        for pas in range(2):
            if pas == 1:
                a("v_mov_b32 v6, v5")
                a("s_nop 1")
                a("v_permlane32_swap_b32 v5, v6")
                a("s_nop 1")
                a("v_max_f32 v5, v5, v6")
                a("v_mov_b32 v6, v5")
                a("s_nop 1")
                a("v_permlane16_swap_b32 v5, v6")
                a("s_nop 1")
                a("v_max_f32 v5, v5, v6")
                a(f"v_mul_f32 v5, s{sC}, v5")
                a("v_mov_b32 v7, 0")
                for k in range(32):
                    a(f"v_mov_b32 v{96+k}, 0")
                a("s_mov_b32 s77, 0")
                a("L_slow_pv:")
            a("s_add_u32 s78, s77, 4096")
            for f in range(8):
                a(f"buffer_load_dwordx4 v[{128+4*f}:{131+4*f}], v2, s[{sK}:{sK+3}], s{77 + (f >> 2)} offen offset:{(f & 3)*64}")
            if pas == 1:
                for f in range(8):
                    for jj in range(8):
                        a(f"buffer_load_ushort v{160+8*f+jj}, v3, s[{sV}:{sV+3}], s{77 + (jj >> 2)} offen offset:{(jj & 3)*256 + f*32}")
                    if f == 3:
                        a("s_waitcnt vmcnt(16)")
            a("s_waitcnt vmcnt(0)")
            for f in range(8):
                kb, ks = f >> 2, f & 3
                d = f"v[{16+4*kb}:{19+4*kb}]"
                a(f"{M} {d}, v[{128+4*f}:{131+4*f}], v[{64+4*ks}:{67+4*ks}], {'0' if ks == 0 else d}")
            a("s_nop 7")
            a("s_nop 1")
            if pas == 0:
                for k in range(0, 8, 2):
                    a(f"v_max3_f32 v5, v5, v{16+k}, v{17+k}")
                a("s_add_u32 s77, s77, 8192")
                a("s_cmp_lt_u32 s77, 131072")
                a("s_cbranch_scc1 L_slow_max")
            else:
                for k in range(8):
                    a(f"v_fma_f32 v{16+k}, v{16+k}, s{sC}, -v5")
                for k in range(8):
                    a(f"v_exp_f32 v{16+k}, v{16+k}")
                a("s_nop 0")
                for k in range(8):
                    a(f"v_add_f32 v7, v7, v{16+k}")
                for k in range(4):
                    a(f"v_cvt_pk_bf16_f32 v{32+k}, v{16+2*k}, v{17+2*k}")
                for k in range(32):
                    a(f"v_lshl_or_b32 v{224+k}, v{161+2*k}, 16, v{160+2*k}")
                a("s_nop 1")
                for f in range(8):
                    d = f"v[{96+4*f}:{99+4*f}]"
                    a(f"{M} {d}, v[{224+4*f}:{227+4*f}], v[32:35], {d}")
                a("s_add_u32 s77, s77, 8192")
                a("s_cmp_lt_u32 s77, 131072")
                a("s_cbranch_scc1 L_slow_pv")
        a("v_mov_b32 v6, v7")
        a("s_nop 1")
        a("v_permlane32_swap_b32 v7, v6")
        a("s_nop 1")
        a("v_add_f32 v7, v7, v6")
        a("v_mov_b32 v6, v7")
        a("s_nop 1")
        a("v_permlane16_swap_b32 v7, v6")
        a("s_nop 1")
        a("v_add_f32 v7, v7, v6")
        a("v_rcp_f32 v7, v7")
        a("s_nop 7")
        for k in range(32):
            a(f"v_mul_f32 v{96+k}, v7, v{96+k}")
        for k in range(16):
            a(f"v_cvt_pk_bf16_f32 v{128+k}, v{96+2*k}, v{97+2*k}")
        for f in range(8):
            a(f"buffer_store_dwordx2 v[{128+2*f}:{129+2*f}], v4, s[{sO}:{sO+3}], s76 offen offset:{f*32}")
        a("s_waitcnt vmcnt(0)")
        a("s_add_u32 s76, s76, 16384")
        a(f"s_cmp_lt_u32 s76, {16384*(NT1+NT2)}")
        a("s_cbranch_scc1 L_slow_sub")
        return L

    def stamp_out(self):
        L = ["s_waitcnt vmcnt(0) lgkmcnt(0)", "s_memrealtime s[94:95]", "s_memtime s[96:97]", "s_waitcnt lgkmcnt(0)",
             "s_mov_b32 s76, s14", "s_mov_b32 s77, s15", "s_mov_b32 s78, 0x1000000", "s_mov_b32 s79, 0x20000",
             "v_lshrrev_b32 v1, 6, v0", "v_lshlrev_b32 v1, 6, v1", "s_lshl_b32 s3, s2, 8", "v_add_u32 v1, s3, v1"]
        for n, s in enumerate([90, 91, 92, 93, 94, 95, 96, 97, 84, 85, 86, 82, 88, 89, 80, 81]):
            L.append(f"v_mov_b32 v{4+n}, s{s}")
        L += ["v_and_b32 v2, 63, v0", "v_cmp_eq_u32 vcc, 0, v2", "s_and_saveexec_b64 s[98:99], vcc"]
        for n in range(4):
            L.append(f"buffer_store_dwordx4 v[{4+4*n}:{7+4*n}], v1, s[76:79], 0 offen offset:{16*n}")
        return L

    def text(self):
        self.schedule()
        body = self.linear()
        verify(body)
        tail = [f"s_cmp_lg_u64 s[{sFLAG}:{sFLAG+1}], 0", "s_cbranch_scc1 L_slow"] if self.o["slow"] else []
        if self.o.get("forceslow"):
            tail = ["s_branch L_slow"]
        tail += ["L_done:"]
        if self.o["stamps"]:
            tail += self.stamp_out()
        tail += ["L_exit:", "s_endpgm", "L_codeend:"]
        if self.o["slow"]:
            sp = self.slow_path()
            verify(sp)
            tail += sp + ["s_branch L_done"]
        hdr = open("header.txt").read()
        fmt = lambda x: (x if x.endswith(":") or x.startswith(";") else "    " + x)
        return (hdr + f""".amdgcn_target "amdgcn-amd-amdhsa--gfx950"
.text
.globl {KN}
.p2align 8
.type {KN},@function
{KN}:
""" + "\n".join(fmt(x) for x in body + tail) + f"""
.section .rodata,"a"
.p2align 6
.amdhsa_kernel {KN}
  .amdhsa_next_free_vgpr 512
  .amdhsa_next_free_sgpr 102
  .amdhsa_accum_offset 256
  .amdhsa_group_segment_fixed_size 0
  .amdhsa_kernarg_size 48
  .amdhsa_user_sgpr_count 2
  .amdhsa_user_sgpr_kernarg_segment_ptr 1
  .amdhsa_system_sgpr_workgroup_id_x 1
.end_amdhsa_kernel
""")


def regs(tok):
    tok = tok.strip().lstrip("-")
    m = re.fullmatch(r"([va])(\d+)", tok)
    if m:
        return {(m.group(1), int(m.group(2)))}
    m = re.fullmatch(r"([va])\[(\d+):(\d+)\]", tok)
    if m:
        return {(m.group(1), k) for k in range(int(m.group(2)), int(m.group(3)) + 1)}
    return set()


def parse(x):
    x = x.split(";")[0].strip()
    if not x or x.endswith(":"):
        return None
    op, _, rest = x.partition(" ")
    ops = [t.strip() for t in rest.split(",")]
    last = ops[-1].split()
    if last:
        ops[-1] = last[0]
    d = dict(op=op, w=set(), rd=set(), kind="s", c=set(), ws=1, m0w=False)
    if op == "s_nop":
        d["ws"] = int(ops[0]) + 1
    if op.startswith("s_") and ops and ops[0] == "m0":
        d["m0w"] = True
    if op.startswith("v_mfma"):
        d.update(kind="mfma", w=regs(ops[0]), rd=regs(ops[1]) | regs(ops[2]), c=regs(ops[3]))
    elif op.startswith("v_"):
        d["kind"] = "valu"
        if op.startswith("v_cmp") or op.startswith("v_readfirstlane"):
            d["rd"] = set().union(*[regs(t) for t in ops[1:]])
        elif op.startswith("v_permlane"):
            d["w"] = regs(ops[0]) | regs(ops[1]); d["rd"] = set(d["w"])
        else:
            d["w"] = regs(ops[0]); d["rd"] = set().union(*[regs(t) for t in ops[1:]])
        d["trans"] = op.startswith(("v_exp", "v_rcp"))
    elif op.startswith("ds_read"):
        d.update(kind="ds", w=regs(ops[0]), rd=regs(ops[1]))
    elif op.startswith("buffer_store"):
        d.update(kind="store", rd=regs(ops[0]) | regs(ops[1]), data=regs(ops[0]))
    elif op.startswith(("buffer_load", "global_load")):
        if " lds" in x:
            d.update(kind="dma", rd=regs(ops[0]))
        else:
            d.update(kind="load", w=regs(ops[0]), rd=regs(ops[1]))
    return d


def verify(L):
    ins = [(x, parse(x)) for x in L]
    ins = [(x, d) for x, d in ins if d]
    bad = 0
    for n, (x, d) in enumerate(ins):
        dist = 0
        for m in range(n - 1, max(-1, n - 14), -1):
            y, p = ins[m]
            need = 0
            if p["kind"] == "mfma":
                if d["kind"] == "mfma":
                    if p["w"] & d["rd"]:
                        need = 8
                    elif p["w"] & d["c"] and p["w"] != d["c"]:
                        need = 6
                    elif p["w"] & d["w"] and p["w"] != d["w"]:
                        need = 6
                elif p["w"] & (d["rd"] | d["w"]):
                    need = 8
                elif d["kind"] == "valu" and p["c"] & d["w"]:
                    need = 3
            elif p["kind"] == "valu":
                if d["kind"] == "mfma" and p["w"] & (d["rd"] | d["c"]):
                    need = 2
                elif d["kind"] == "valu" and p.get("trans") and not d.get("trans") and p["w"] & d["rd"]:
                    need = 1
                elif d["op"].startswith("v_permlane") and p["w"] & d["rd"]:
                    need = 2
                elif d["op"].startswith("v_readfirstlane") and p["w"] & d["rd"]:
                    need = 1
            elif p["kind"] == "store":
                if p["data"] & d["w"]:
                    need = 2
            elif p["m0w"] and d["kind"] == "dma":
                need = 1
            if dist < need:
                print(f"HAZARD need {need} have {dist}:\n   {y}\n   {x}", file=sys.stderr)
                bad += 1
            dist += p["ws"]
    assert bad == 0


if __name__ == "__main__":
    opt = {}
    out = sys.argv[1]
    for kv in sys.argv[2:]:
        k, v = kv.split("=", 1)
        try:
            v = eval(v)
        except Exception:
            pass
        opt[k] = v
    g = Gen(opt)
    t = g.text()
    open(out, "w").write(t)
    G = g.gaps
    print(f"{out}: max vm outstanding {g.maxout}, scale ends slot {G[g.scale_end].slot}, drain1 ends at slot {G[g.drain1_end].slot}, tail instrs {len(G[-1].v)}, "
          f"free units job1 {sum(x.free_v() for x in G if x.slot < J2)}, job2 {sum(x.free_v() for x in G[:-1] if x.slot >= J2)}", file=sys.stderr)
```

```python
import sys, re, struct, math

KN = "standalone__mha_softmax__near_ridge_kernel"

vTID = 0
vQO = 1
vDK, vDV = 2, 3
vKA = [4, 5, 6]
vVA = [7, 8, 9]
vR = 10
vS = 16
vP = 32
vT = 40
vO1 = 64
vQ1 = 160
aO1 = 0
aK = 96
aV = 128
aQ2 = 160
aL = 224
aONE = 248

sQ, sK, sV, sO = 16, 20, 24, 28
sW4K = 32
sTMP = 33
sC = 34
sMASK = 35
sLO, sRNG = 38, 39
sFLAG = 40
sROW = 44
sUNIT = 56

C_SCALE = struct.unpack("<I", struct.pack("<f", math.log2(math.e) / math.sqrt(128.0)))[0]
L_LO = (127 - 40) << 23
L_HI = (127 + 60) << 23

NT1, NT2 = 6, 4
NITEM = 16 * NT1 + 16 * NT2
J2 = 16 * NT1


def item(i):
    if i < J2:
        return 0, i // NT1, i % NT1
    return 1, 16 + (i - J2) // NT2, (i - J2) % NT2


def first(t):
    return t * NT1 if t <= 16 else J2 + (t - 16) * NT2


def unit_of(t):
    return t if t < 16 else (t - 10 if t < 26 else t - 26)


def r(cls, lo, n=1):
    return f"{cls}{lo}" if n == 1 else f"{cls}[{lo}:{lo+n-1}]"


def Qreg(job, j, ks):
    return r("v", vQ1 + 16 * j + 4 * ks, 4) if job == 0 else r("a", aQ2 + 16 * j + 4 * ks, 4)


def Obase(job, j):
    if job == 0:
        return ("v", vO1 + 32 * j) if j < 3 else ("a", aO1 + 32 * (j - 3))
    return ("v", vQ1 + 32 * j) if j < 3 else ("v", vO1)


class Gap:
    def __init__(self, mfma, slot, g):
        self.mfma = mfma
        self.slot, self.g = slot, g
        self.s, self.m, self.v = [], [], []
        self.units = 0
        self.pre = []
        self.locked = False

    def free_v(self):
        return 0 if self.locked else min(2 - self.units, 3 - self.units - len(self.s))

    def free_s(self):
        return 0 if self.locked else (3 - self.units - len(self.s) if self.s else 1)


class Gen:
    def __init__(self, opt):
        self.o = dict(ldflag="nt", qflag="nt", stflag="", reflag="nt", stamps=False, prefetch=True,
                      q2pos=(4, 7, 9, 12), slow=True, look=3, nstart=4,
                      start="K0 Q0 Q1 V0 Q2|Q3|Q4|K1 Q5|V1|U2|U3", b1="K1")
        self.o.update(opt)
        self.gaps = []
        self.idx = {}

    def build_gaps(self):
        M = "v_mfma_f32_16x16x32_bf16"
        for s in range(-1, NITEM + 1):
            if s + 1 < NITEM:
                job, t, j = item(s + 1)
                S = vS + 8 * ((s + 1) & 1)
                for f in range(8):
                    kb, ks = f >> 2, f & 3
                    d = r("v", S + 4 * kb, 4)
                    c = "0" if ks == 0 else d
                    self.add(f"{M} {d}, {r('a', aK+4*f, 4)}, {Qreg(job, j, ks)}, {c}", s, f)
            if s - 1 >= 0:
                job, t, j = item(s - 1)
                P = r("v", vP + 4 * ((s - 1) & 1), 4)
                cls, ob = Obase(job, j)
                z = t in (0, 16)
                for f in range(8):
                    d = r(cls, ob + 4 * f, 4)
                    self.add(f"{M} {d}, {r('a', aV+4*f, 4)}, {P}, {'0' if z else d}", s, 8 + f)
                d = r("a", aL + 4 * j, 4)
                self.add(f"{M} {d}, {r('a', aONE, 4)}, {P}, {'0' if z else d}", s, 16)
        self.add(None, NITEM + 1, 0)

    def add(self, mfma, slot, g):
        self.idx[(slot, g)] = len(self.gaps)
        self.gaps.append(Gap(mfma, slot, g))

    def at(self, slot, g):
        while (slot, g) not in self.idx:
            g += 1
            if g > 16:
                slot, g = slot + 1, 0
        return self.idx[(slot, g)]

    def place(self, text, kind, units, lo, hi=None, what=""):
        n = len(self.gaps) - 1
        k = lo
        while True:
            gp = self.gaps[k]
            if k == n:
                break
            if kind == "s":
                if gp.free_s() >= 1:
                    break
            elif gp.free_v() >= units:
                break
            k += 1
        if hi is not None and k > hi:
            raise Exception(f"deadline miss {what or text}: lo={lo} hi={hi} got {k}")
        if k == n:
            gp.v.append(text)
        elif kind == "s":
            gp.s.append(text)
        else:
            (gp.m if kind == "m" else gp.v).append(text)
            gp.units += units
        return k

    def stream(self, ops, lo, hi=None, what=""):
        k = lo
        prevkind = None
        rank = {"s": 0, "m": 1, "v": 2}
        for text, kind, units, sep in ops:
            start = k + sep
            if prevkind is not None and sep == 0 and rank[kind] < rank[prevkind]:
                start = k + 1
            start = min(start, len(self.gaps) - 1)
            k = self.place(text, kind, units, start, hi, what)
            prevkind = kind
        return k

    def place_softmax(self):
        for i in range(NITEM):
            S = vS + 8 * (i & 1)
            P = vP + 4 * (i & 1)
            lo = self.at(i, 0)
            if i == 0 or i == NITEM - 1:
                ops = []
                for e in range(8):
                    ops.append((f"v_exp_f32 v{S+e}, v{S+e}", "v", 2, 0))
                    if e & 1:
                        ops.append((f"v_cvt_pk_bf16_f32 v{P+e//2}, v{S+e-1}, v{S+e}", "v", 1, 1))
                if i == 0:
                    self.sm0 = [x[0] for x in ops if "exp" in x[0]] + ["s_nop 0"] + [x[0] for x in ops if "cvt" in x[0]]
                else:
                    self.smlast = [x[0] for x in ops]
                continue
            for e in range(8):
                k = self.idx[(i, 2 * e)]
                self.place(f"v_exp_f32 v{S+e}, v{S+e}", "v", 2, k, k)
                if e & 1:
                    k = self.idx[(i, 2 * e + 1)]
                    self.place(f"v_cvt_pk_bf16_f32 v{P+e//2}, v{S+e-1}, v{S+e}", "v", 1, k, k)

    def kread(self, t, f):
        sl = t % 10
        kb, ks = f >> 2, f & 3
        return f"ds_read_b128 {r('a', aK+4*f, 4)}, v{vKA[sl//4]} offset:{(sl%4)*16384 + kb*8192 + ks*256}"

    def vread(self, t, f, h):
        sl = t % 10
        u, e = f >> 1, f & 1
        return f"ds_read_b64_tr_b16 {r('a', aV+4*f+2*h, 2)}, v{vVA[sl//4]} offset:{(sl%4)*16384 + h*8192 + u*256 + e*8}"

    def place_reads(self):
        self.need = {}
        for t in range(1, 32):
            s = first(t) - 2
            for f in range(8):
                lo = self.idx[(s, f)]
                use = self.idx[(s + 1, f)]
                txt = self.kread(t, f)
                self.place(txt, "m", 1, lo, use - 5, "kread")
                self.need.setdefault(use, []).append(txt)
        for t in range(0, 32):
            s = first(t)
            for f in range(8):
                use = self.idx[(s + 1, 8 + f)]
                lo = self.idx[(s, 8 + f)] if t > 0 else self.idx[(1, 0)]
                for h in range(2):
                    txt = self.vread(t, f, h)
                    if t == 0:
                        self.v0reads.append(txt)
                    else:
                        self.place(txt, "m", 1, lo, use - 5, "vread")
                        self.need.setdefault(use, []).append(txt)

    def dma(self, t, which):
        u = unit_of(t)
        fl = self.o["ldflag"] if t < 16 else self.o["reflag"]
        if t < 6 and self.o.get("keepflag") is not None:
            fl = self.o["keepflag"]
        out = []
        if "k" in which:
            out += [f"buffer_load_dwordx4 v{vDK}, s[{sK}:{sK+3}], s{sUNIT+u} offen offset:{o} {fl} lds ; K{t}" for o in (0, 1024)]
        if "v" in which:
            out += [f"buffer_load_dwordx4 v{vDV}, s[{sV}:{sV+3}], s{sUNIT+u} offen offset:{o} {fl} lds ; V{t}" for o in (2048, 3072)]
        return out

    def m0(self, t):
        return f"s_add_u32 m0, s{sW4K}, {(t % 10) * 16384}"

    def qload(self, job, j):
        return [f"buffer_load_dwordx4 {Qreg(job, j, ks)}, v{vQO}, s[{sQ}:{sQ+3}], s{sROW + job*NT1 + j} offen offset:{ks*64} {self.o['qflag']} ; Q{job}_{j}"
                for ks in range(4)]

    def scale_v(self, j):
        out = []
        for k in range(16):
            q = vQ1 + 16 * j + k
            a, b = vT + 2 * (k & 1), vT + 2 * (k & 1) + 1
            out += [f"v_lshlrev_b32 v{a}, 16, v{q}", f"v_and_b32 v{b}, s{sMASK}, v{q}",
                    f"v_mul_f32 v{a}, s{sC}, v{a}", f"v_mul_f32 v{b}, s{sC}, v{b}",
                    f"v_cvt_pk_bf16_f32 v{q}, v{a}, v{b}"]
        return out

    def scale_a(self, j):
        out = []
        for k in range(16):
            q = aQ2 + 16 * j + k
            a, b = vT, vT + 1
            out += [f"v_accvgpr_read_b32 v{b}, a{q}", f"v_lshlrev_b32 v{a}, 16, v{b}", f"v_and_b32 v{b}, s{sMASK}, v{b}",
                    f"v_mul_f32 v{a}, s{sC}, v{a}", f"v_mul_f32 v{b}, s{sC}, v{b}",
                    f"v_cvt_pk_bf16_f32 v{a}, v{a}, v{b}", f"v_accvgpr_write_b32 a{q}, v{a}"]
        return [(x, "v", 1, 0) for x in out]

    def lsum_ops(self, j):
        R = vR + j
        t = vT + 2
        return [(f"v_accvgpr_read_b32 v{R}, a{aL+4*j}", "v", 1, 0),
                (f"v_subrev_u32 v{t}, s{sLO}, v{R}", "v", 1, 0),
                (f"v_cmp_lt_u32 vcc, s{sRNG}, v{t}", "v", 1, 0),
                (f"v_rcp_f32 v{R}, v{R}", "v", 2, 0),
                (f"s_or_b64 s[{sFLAG}:{sFLAG+1}], s[{sFLAG}:{sFLAG+1}], vcc", "s", 0, 1)]

    def drain_ops(self, job, j):
        cls, ob = Obase(job, j)
        R = vR + j
        ops = []
        for u in range(4):
            if cls == "v":
                b = ob + 8 * u
            else:
                b = vT + 8 + 8 * (u & 1)
                for k in range(8):
                    ops.append((f"v_accvgpr_read_b32 v{b+k}, a{ob+8*u+k}", "v", 1, 0))
            for k in range(8):
                ops.append((f"v_mul_f32 v{b+k}, v{R}, v{b+k}", "v", 1, 0))
            for k in range(4):
                ops.append((f"v_cvt_pk_bf16_f32 v{b+k}, v{b+2*k}, v{b+2*k+1}", "v", 1, 0))
            ops.append((f"buffer_store_dwordx4 {r('v', b, 4)}, v{vQO}, s[{sO}:{sO+3}], s{sROW + job*NT1 + j} offen offset:{u*64} {self.o['stflag']} ; O{job}_{j}", "m", 2, 1))
        return ops

    def barrier_gap(self, t):
        return self.at(first(t) - 3, 16)

    def schedule(self):
        o = self.o
        self.v0reads = []
        self.build_gaps()
        G = self.gaps
        self.bars = {}
        bar_ts = list(range(1, 16)) + [19, 22, 26, 29]
        for t in bar_ts:
            k = self.barrier_gap(t)
            self.bars[t] = k
            tag = {26: "V28", 29: "V31", 1: o["b1"]}.get(t, f"V{t}" if t < 16 else None)
            G[k].s.append(f"@VMWAIT {tag}" if tag else "s_nop 0")
            G[k].s.append("s_barrier")
            G[k].locked = True
        if o["b1"] == "K1":
            k = self.idx[(first(1) - 1, 16)]
            G[k].s += ["@VMWAIT V1", "s_barrier"]
            G[k].locked = True
        self.place_softmax()
        self.place_reads()
        def grp(names):
            out = []
            for nm in names:
                if nm[0] == "Q":
                    out += self.qload(0, int(nm[1:]))
                else:
                    out += [self.m0(int(nm[1:])), "s_nop 0"] + self.dma(int(nm[1:]), {"K": "k", "V": "v", "U": "kv"}[nm[0]])
            return out
        st = [x.split() for x in o["start"].split("|")]
        self.init_groups = grp(st[0])
        G[self.idx[(-1, 0)]].pre += (["@VMWAIT Q0_0"] + grp(st[1]) + self.scale_v(0) + ["@VMWAIT K0", "s_barrier"] +
                                     [self.kread(0, f) for f in range(8)] + ["s_waitcnt lgkmcnt(0)"])
        G[self.idx[(0, 0)]].pre += ["@VMWAIT Q0_1"] + grp(st[2]) + self.scale_v(1) + ["s_nop 1"]
        G[self.idx[(1, 0)]].pre += (self.sm0 + ["@VMWAIT V0", "s_barrier"] + self.v0reads +
                                    ["@VMWAIT Q0_2"] + grp(st[3]) + self.scale_v(2) + ["s_waitcnt lgkmcnt(0)"])
        for j in range(3, NT1):
            G[self.idx[(j - 1, 0)]].pre += [f"@VMWAIT Q0_{j}"] + grp(st[j + 1]) + self.scale_v(j) + ["s_nop 1"]
        self.insert_lgkm_waits()
        q2 = {p: n for n, p in enumerate(o["q2pos"])}
        look = o["look"]
        k = 0
        for t in range(o["nstart"], 16):
            bt = max(1, t - look, t - 9)
            lo = max(k + 1, self.bars[bt] + 1)
            if t in q2:
                k = self.stream([(x, "m", 2, 1) for x in self.qload(1, q2[t])], lo, what="q2")
                lo = k + 1
            ops = [(self.m0(t), "s", 0, 0)] + [(x, "m", 2, 1) for x in self.dma(t, "kv")]
            k = self.stream(ops, lo, what=f"u{t}")
        for bt, ts in ((19, (26, 27, 28)), (22, (29, 30, 31))):
            k = self.bars[bt] + 1
            for t in ts:
                ops = [(self.m0(t), "s", 0, 0)] + [(x, "m", 2, 1) for x in self.dma(t, "kv")]
                k = self.stream(ops, k, what=f"re{t}") + 1
        k = 0
        for n in range(NT2):
            lo = max(k, self.bars[o["q2pos"][n]] + 1)
            hi = self.idx[(J2 + n - 1, 0)] - 2
            k = self.stream(self.scale_a(n), lo, hi, f"scale{n}")
        self.scale_end = k
        lend = {}
        k = 0
        for j in range(NT1):
            fin = self.idx[(first(15) + j + 1, 16)]
            hi = self.idx[(first(16) + j + 1, 16)] - 2 if j < NT2 else None
            k = self.stream(self.lsum_ops(j)[:1], max(k, fin + 5), hi, "lsum")
            lend[j] = k
        k = 0
        for j in range(NT1):
            hi = self.idx[(J2 + 3 + 1, 8)] - 2 if j == 0 else None
            k = self.stream(self.lsum_ops(j)[1:], max(k, lend[j]), hi, f"lrest{j}")
            k = self.stream(self.drain_ops(0, j), k, hi, f"drain{j}")
        self.drain1_end = k
        kk = self.at(NITEM - 1, 0)
        ops = []
        S = vS + 8 * ((NITEM - 1) & 1)
        for x in self.smlast:
            ops.append((x, "v", 2 if "exp" in x else 1, 0 if "exp" in x else 1))
        placed = 0
        lastg = self.idx[(NITEM, 8)]
        rest = []
        kcur = kk
        for op in ops:
            ok = False
            if not rest:
                kt = kcur + op[3]
                while kt < lastg and G[kt].free_v() < op[2]:
                    kt += 1
                if kt < lastg:
                    self.place(op[0], "v", op[2], kt, kt)
                    kcur = kt
                    ok = True
            if not ok:
                rest.append(op[0])
        G[lastg].pre += [x for x in rest if "exp" in x] + ["s_nop 0"] + [x for x in rest if "cvt" in x] + ["s_nop 1"]
        k = max(k, 0)
        for j in range(NT2):
            fin = self.idx[(first(31) + j + 1, 16)]
            if j == NT2 - 1:
                self.gaps[-1].v.append("s_nop 7")
                lo = len(G) - 1
            else:
                lo = fin + 5
            k = self.stream(self.lsum_ops(j), max(k, min(lo, len(G) - 1)), None, "lsum2")
            if k == len(G) - 1:
                self.gaps[-1].v.append("s_nop 0")
            k = self.stream(self.drain_ops(1, j), min(k + 1, len(G) - 1), None, "drain2")

    def insert_lgkm_waits(self):
        G = self.gaps
        issued = []
        done = 0
        for k, gp in enumerate(G):
            for x in gp.pre:
                if x.startswith("ds_"):
                    issued.append(x)
                if x.startswith("s_waitcnt lgkmcnt(0)"):
                    done = len(issued)
            nd = self.need.get(k + 1, [])
            if nd:
                pos = max(len(issued) - 1 - issued[::-1].index(x) for x in nd)
                if pos >= done:
                    n = len(issued) - 1 - pos
                    assert n <= 15
                    w = f"s_waitcnt lgkmcnt({n})"
                    if gp.locked:
                        gp.s.insert(0, w)
                    else:
                        if gp.free_s() < 1:
                            print(f"; note: gap {gp.slot},{gp.g} overfull by lgkm wait", file=sys.stderr)
                        gp.s.insert(0, w)
                    done = pos + 1
            for x in gp.m:
                if x.startswith("ds_"):
                    issued.append(x)

    def prologue(self):
        o = self.o
        L = []
        a = L.append
        if o["stamps"]:
            a("s_memrealtime s[90:91]"); a("s_memtime s[92:93]")
        a("s_cmp_ge_u32 s2, 256")
        a("s_cbranch_scc1 L_exit")
        a("s_load_dwordx8 s[4:11], s[0:1], 0")
        if o["stamps"]:
            a("s_load_dwordx4 s[12:15], s[0:1], 32")
        a(f"v_lshrrev_b32 v10, 6, v0              ; wave")
        a(f"v_and_b32 v11, 63, v0                 ; lane")
        a(f"v_readfirstlane_b32 s{sTMP}, v10")
        a(f"v_and_b32 v12, 15, v0                 ; i")
        a(f"v_lshrrev_b32 v13, 4, v11             ; g")
        a(f"v_and_b32 v14, 3, v0                  ; lane&3")
        a(f"v_bfe_u32 v15, v0, 2, 2               ; (lane>>2)&3")
        a(f"s_lshl_b32 s{sW4K}, s{sTMP}, 12")
        a(f"v_lshlrev_b32 v{vQO}, 8, v12")
        a(f"v_lshl_add_u32 v{vQO}, v13, 4, v{vQO}")
        a(f"v_lshl_add_u32 v{vQO}, v10, 12, v{vQO}")
        a(f"v_lshlrev_b32 v16, 1, v10")
        a(f"v_and_b32 v16, 2, v16")
        a(f"v_xor_b32 v16, v16, v15")
        a(f"v_lshlrev_b32 v17, 11, v10")
        a(f"v_lshl_add_u32 v17, v13, 6, v17       ; w*2048 + g*64")
        a(f"v_lshl_add_u32 v{vDK}, v14, 8, v17")
        a(f"v_lshl_add_u32 v{vDK}, v16, 4, v{vDK}")
        a(f"v_lshl_add_u32 v{vDV}, v15, 8, v17")
        a(f"v_lshl_add_u32 v{vDV}, v14, 4, v{vDV}")
        a(f"s_mul_i32 s{sTMP}, s2, 155648")
        a(f"s_lshl_b32 s3, s2, 17")
        a(f"s_mov_b32 s{sK+2}, 131072")
        a(f"s_mov_b32 s{sK+3}, 0x20000")
        a(f"s_mov_b32 s{sQ+2}, 155648")
        a(f"s_mov_b32 s{sQ+3}, 0x20000")
        a(f"s_mov_b32 s{sV+2}, {131072+2048}")
        a(f"s_mov_b32 s{sV+3}, 0x20000")
        a(f"s_mov_b32 s{sO+2}, 155648")
        a(f"s_mov_b32 s{sO+3}, 0x20000")
        for u in range(16):
            a(f"s_mov_b32 s{sUNIT+u}, {u*8192}")
        for j in range(NT1 + NT2):
            a(f"s_mov_b32 s{sROW+j}, {j*16384}")
        if o["prefetch"]:
            a("s_getpc_b64 s[72:73]")
            a("L_pc:")
            a("s_lshr_b32 s74, s2, 3")
            a("s_and_b32 s74, s74, 31")
            a("s_lshl_b32 s74, s74, 11")
            a("v_lshlrev_b32 v18, 9, v10")
            a("v_lshl_add_u32 v18, v14, 7, v18")
            a("v_add_u32 v18, s74, v18")
            a("v_min_u32 v18, L_codeend-L_pc-4, v18")
            a(f"global_load_dword v{vT+23}, v18, s[72:73] ; PF")
        a("s_waitcnt lgkmcnt(0)")
        a(f"s_add_u32 s{sK}, s6, s3")
        a(f"s_addc_u32 s{sK+1}, s7, 0")
        a(f"s_add_u32 s{sQ}, s4, s{sTMP}")
        a(f"s_addc_u32 s{sQ+1}, s5, 0")
        a(f"s_add_u32 s{sV}, s8, s3")
        a(f"s_addc_u32 s{sV+1}, s9, 0")
        a(f"s_sub_u32 s{sV}, s{sV}, 2048")
        a(f"s_subb_u32 s{sV+1}, s{sV+1}, 0")
        L += self.init_groups
        a(f"s_add_u32 s{sO}, s10, s{sTMP}")
        a(f"s_addc_u32 s{sO+1}, s11, 0")
        a(f"v_lshrrev_b32 v16, 1, v15")
        a(f"v_and_b32 v17, 1, v15")
        a(f"v_lshlrev_b32 v18, 12, v16")
        a(f"v_lshl_add_u32 v18, v17, 10, v18")
        a(f"v_and_b32 v16, 2, v15")
        a(f"v_xor_b32 v16, v16, v13")
        a(f"v_lshl_add_u32 v18, v16, 6, v18")
        a(f"v_lshl_add_u32 v{vKA[0]}, v14, 4, v18")
        a(f"v_add_u32 v{vKA[1]}, 0x10000, v{vKA[0]}")
        a(f"v_add_u32 v{vKA[2]}, 0x20000, v{vKA[0]}")
        a(f"v_lshrrev_b32 v16, 1, v13")
        a(f"v_and_b32 v17, 1, v13")
        a(f"v_lshlrev_b32 v18, 12, v16")
        a(f"v_lshl_add_u32 v18, v17, 10, v18")
        a(f"v_lshl_add_u32 v18, v12, 4, v18      ; (i>>2)*64+(i&3)*16 = i*16")
        a(f"v_add_u32 v{vVA[0]}, 2048, v18")
        a(f"v_add_u32 v{vVA[1]}, 0x10000, v{vVA[0]}")
        a(f"v_add_u32 v{vVA[2]}, 0x20000, v{vVA[0]}")
        a(f"v_mov_b32 v16, 0x3f803f80")
        for k in range(4):
            a(f"v_accvgpr_write_b32 a{aONE+k}, v16")
        a(f"s_mov_b32 s{sC}, {C_SCALE:#x}")
        a(f"s_mov_b32 s{sMASK}, 0xffff0000")
        a(f"s_mov_b32 s{sLO}, {L_LO:#x}")
        a(f"s_mov_b32 s{sRNG}, {L_HI-L_LO:#x}")
        a(f"s_mov_b64 s[{sFLAG}:{sFLAG+1}], 0")
        return L

    def linear(self):
        L = self.prologue()
        st = self.o["stamps"]
        for k, gp in enumerate(self.gaps):
            if st and k == self.idx[(4, 0)]:
                L += gp.pre + ["s_memrealtime s[84:85]", "s_memtime s[86:87]"]
            elif st and k == self.idx[(J2, 0)]:
                L += gp.pre + ["s_memrealtime s[82:83]"]
            elif st and gp.mfma is None:
                L += gp.pre + ["s_memrealtime s[88:89]", "s_memtime s[80:81]"]
            else:
                L += gp.pre
            if gp.mfma:
                if gp.g == 0 or (gp.slot >= NITEM - 1 and gp.g == 8):
                    L.append(f"; ---- slot {gp.slot}")
                L.append(gp.mfma)
            L += gp.s + gp.m + gp.v
        out = []
        vm = []
        done = 0
        self.maxout = 0
        for x in L:
            if x.startswith("@VMWAIT"):
                tag = x.split()[1]
                pos = max(n for n, y in enumerate(vm) if y == tag)
                n = len(vm) - 1 - pos
                assert n <= 63, (tag, n)
                if pos >= done:
                    done = pos + 1
                out.append(f"s_waitcnt vmcnt({n})")
                continue
            if x.startswith(("buffer_", "global_")):
                vm.append(x.split(";")[-1].strip())
                self.maxout = max(self.maxout, len(vm) - done)
            out.append(x)
        return out

    def slow_path(self):
        L = []
        a = L.append
        M = "v_mfma_f32_16x16x32_bf16"
        a("L_slow:")
        a("s_waitcnt vmcnt(0)")
        a("v_and_b32 v12, 15, v0")
        a("v_bfe_u32 v13, v0, 4, 2")
        a("v_lshlrev_b32 v2, 8, v12")
        a("v_lshl_add_u32 v2, v13, 4, v2           ; K offset")
        a("v_lshlrev_b32 v3, 1, v12")
        a("v_lshl_add_u32 v3, v13, 10, v3")
        a("v_add_u32 v3, 2048, v3")
        a("v_lshlrev_b32 v4, 8, v12")
        a("v_lshl_add_u32 v4, v13, 3, v4")
        a(f"v_add_u32 v4, s{sW4K}, v4")
        a("s_mov_b32 s76, 0")
        a("L_slow_sub:")
        for ks in range(4):
            a(f"buffer_load_dwordx4 v[{64+4*ks}:{67+4*ks}], v{vQO}, s[{sQ}:{sQ+3}], s76 offen offset:{ks*64}")
        a("v_mov_b32 v5, 0xff800000")
        a("s_mov_b32 s77, 0")
        a("L_slow_max:")
        for pas in range(2):
            if pas == 1:
                a("v_mov_b32 v6, v5")
                a("s_nop 1")
                a("v_permlane32_swap_b32 v5, v6")
                a("s_nop 1")
                a("v_max_f32 v5, v5, v6")
                a("v_mov_b32 v6, v5")
                a("s_nop 1")
                a("v_permlane16_swap_b32 v5, v6")
                a("s_nop 1")
                a("v_max_f32 v5, v5, v6")
                a(f"v_mul_f32 v5, s{sC}, v5")
                a("v_mov_b32 v7, 0")
                for k in range(32):
                    a(f"v_mov_b32 v{96+k}, 0")
                a("s_mov_b32 s77, 0")
                a("L_slow_pv:")
            a("s_add_u32 s78, s77, 4096")
            for f in range(8):
                a(f"buffer_load_dwordx4 v[{128+4*f}:{131+4*f}], v2, s[{sK}:{sK+3}], s{77 + (f >> 2)} offen offset:{(f & 3)*64}")
            if pas == 1:
                for f in range(8):
                    for jj in range(8):
                        a(f"buffer_load_ushort v{160+8*f+jj}, v3, s[{sV}:{sV+3}], s{77 + (jj >> 2)} offen offset:{(jj & 3)*256 + f*32}")
                    if f == 3:
                        a("s_waitcnt vmcnt(16)")
            a("s_waitcnt vmcnt(0)")
            for f in range(8):
                kb, ks = f >> 2, f & 3
                d = f"v[{16+4*kb}:{19+4*kb}]"
                a(f"{M} {d}, v[{128+4*f}:{131+4*f}], v[{64+4*ks}:{67+4*ks}], {'0' if ks == 0 else d}")
            a("s_nop 7")
            a("s_nop 1")
            if pas == 0:
                for k in range(0, 8, 2):
                    a(f"v_max3_f32 v5, v5, v{16+k}, v{17+k}")
                a("s_add_u32 s77, s77, 8192")
                a("s_cmp_lt_u32 s77, 131072")
                a("s_cbranch_scc1 L_slow_max")
            else:
                for k in range(8):
                    a(f"v_fma_f32 v{16+k}, v{16+k}, s{sC}, -v5")
                for k in range(8):
                    a(f"v_exp_f32 v{16+k}, v{16+k}")
                a("s_nop 0")
                for k in range(8):
                    a(f"v_add_f32 v7, v7, v{16+k}")
                for k in range(4):
                    a(f"v_cvt_pk_bf16_f32 v{32+k}, v{16+2*k}, v{17+2*k}")
                for k in range(32):
                    a(f"v_lshl_or_b32 v{224+k}, v{161+2*k}, 16, v{160+2*k}")
                a("s_nop 1")
                for f in range(8):
                    d = f"v[{96+4*f}:{99+4*f}]"
                    a(f"{M} {d}, v[{224+4*f}:{227+4*f}], v[32:35], {d}")
                a("s_add_u32 s77, s77, 8192")
                a("s_cmp_lt_u32 s77, 131072")
                a("s_cbranch_scc1 L_slow_pv")
        a("v_mov_b32 v6, v7")
        a("s_nop 1")
        a("v_permlane32_swap_b32 v7, v6")
        a("s_nop 1")
        a("v_add_f32 v7, v7, v6")
        a("v_mov_b32 v6, v7")
        a("s_nop 1")
        a("v_permlane16_swap_b32 v7, v6")
        a("s_nop 1")
        a("v_add_f32 v7, v7, v6")
        a("v_rcp_f32 v7, v7")
        a("s_nop 7")
        for k in range(32):
            a(f"v_mul_f32 v{96+k}, v7, v{96+k}")
        for k in range(16):
            a(f"v_cvt_pk_bf16_f32 v{128+k}, v{96+2*k}, v{97+2*k}")
        for f in range(8):
            a(f"buffer_store_dwordx2 v[{128+2*f}:{129+2*f}], v4, s[{sO}:{sO+3}], s76 offen offset:{f*32}")
        a("s_waitcnt vmcnt(0)")
        a("s_add_u32 s76, s76, 16384")
        a(f"s_cmp_lt_u32 s76, {16384*(NT1+NT2)}")
        a("s_cbranch_scc1 L_slow_sub")
        return L

    def stamp_out(self):
        L = ["s_waitcnt vmcnt(0) lgkmcnt(0)", "s_memrealtime s[94:95]", "s_memtime s[96:97]", "s_waitcnt lgkmcnt(0)",
             "s_mov_b32 s76, s14", "s_mov_b32 s77, s15", "s_mov_b32 s78, 0x1000000", "s_mov_b32 s79, 0x20000",
             "v_lshrrev_b32 v1, 6, v0", "v_lshlrev_b32 v1, 6, v1", "s_lshl_b32 s3, s2, 8", "v_add_u32 v1, s3, v1"]
        for n, s in enumerate([90, 91, 92, 93, 94, 95, 96, 97, 84, 85, 86, 82, 88, 89, 80, 81]):
            L.append(f"v_mov_b32 v{4+n}, s{s}")
        L += ["v_and_b32 v2, 63, v0", "v_cmp_eq_u32 vcc, 0, v2", "s_and_saveexec_b64 s[98:99], vcc"]
        for n in range(4):
            L.append(f"buffer_store_dwordx4 v[{4+4*n}:{7+4*n}], v1, s[76:79], 0 offen offset:{16*n}")
        return L

    def text(self):
        self.schedule()
        body = self.linear()
        verify(body)
        tail = [f"s_cmp_lg_u64 s[{sFLAG}:{sFLAG+1}], 0", "s_cbranch_scc1 L_slow"] if self.o["slow"] else []
        if self.o.get("forceslow"):
            tail = ["s_branch L_slow"]
        tail += ["L_done:"]
        if self.o["stamps"]:
            tail += self.stamp_out()
        tail += ["L_exit:", "s_endpgm", "L_codeend:"]
        if self.o["slow"]:
            sp = self.slow_path()
            verify(sp)
            tail += sp + ["s_branch L_done"]
        hdr = open("header.txt").read()
        fmt = lambda x: (x if x.endswith(":") or x.startswith(";") else "    " + x)
        return (hdr + f""".amdgcn_target "amdgcn-amd-amdhsa--gfx950"
.text
.globl {KN}
.p2align 8
.type {KN},@function
{KN}:
""" + "\n".join(fmt(x) for x in body + tail) + f"""
.section .rodata,"a"
.p2align 6
.amdhsa_kernel {KN}
  .amdhsa_next_free_vgpr 512
  .amdhsa_next_free_sgpr 102
  .amdhsa_accum_offset 256
  .amdhsa_group_segment_fixed_size 0
  .amdhsa_kernarg_size 48
  .amdhsa_user_sgpr_count 2
  .amdhsa_user_sgpr_kernarg_segment_ptr 1
  .amdhsa_system_sgpr_workgroup_id_x 1
.end_amdhsa_kernel
""")


def regs(tok):
    tok = tok.strip().lstrip("-")
    m = re.fullmatch(r"([va])(\d+)", tok)
    if m:
        return {(m.group(1), int(m.group(2)))}
    m = re.fullmatch(r"([va])\[(\d+):(\d+)\]", tok)
    if m:
        return {(m.group(1), k) for k in range(int(m.group(2)), int(m.group(3)) + 1)}
    return set()


def parse(x):
    x = x.split(";")[0].strip()
    if not x or x.endswith(":"):
        return None
    op, _, rest = x.partition(" ")
    ops = [t.strip() for t in rest.split(",")]
    last = ops[-1].split()
    if last:
        ops[-1] = last[0]
    d = dict(op=op, w=set(), rd=set(), kind="s", c=set(), ws=1, m0w=False)
    if op == "s_nop":
        d["ws"] = int(ops[0]) + 1
    if op.startswith("s_") and ops and ops[0] == "m0":
        d["m0w"] = True
    if op.startswith("v_mfma"):
        d.update(kind="mfma", w=regs(ops[0]), rd=regs(ops[1]) | regs(ops[2]), c=regs(ops[3]))
    elif op.startswith("v_"):
        d["kind"] = "valu"
        if op.startswith("v_cmp") or op.startswith("v_readfirstlane"):
            d["rd"] = set().union(*[regs(t) for t in ops[1:]])
        elif op.startswith("v_permlane"):
            d["w"] = regs(ops[0]) | regs(ops[1]); d["rd"] = set(d["w"])
        else:
            d["w"] = regs(ops[0]); d["rd"] = set().union(*[regs(t) for t in ops[1:]])
        d["trans"] = op.startswith(("v_exp", "v_rcp"))
    elif op.startswith("ds_read"):
        d.update(kind="ds", w=regs(ops[0]), rd=regs(ops[1]))
    elif op.startswith("buffer_store"):
        d.update(kind="store", rd=regs(ops[0]) | regs(ops[1]), data=regs(ops[0]))
    elif op.startswith(("buffer_load", "global_load")):
        if " lds" in x:
            d.update(kind="dma", rd=regs(ops[0]))
        else:
            d.update(kind="load", w=regs(ops[0]), rd=regs(ops[1]))
    return d


def verify(L):
    ins = [(x, parse(x)) for x in L]
    ins = [(x, d) for x, d in ins if d]
    bad = 0
    for n, (x, d) in enumerate(ins):
        dist = 0
        for m in range(n - 1, max(-1, n - 14), -1):
            y, p = ins[m]
            need = 0
            if p["kind"] == "mfma":
                if d["kind"] == "mfma":
                    if p["w"] & d["rd"]:
                        need = 8
                    elif p["w"] & d["c"] and p["w"] != d["c"]:
                        need = 6
                    elif p["w"] & d["w"] and p["w"] != d["w"]:
                        need = 6
                elif p["w"] & (d["rd"] | d["w"]):
                    need = 8
                elif d["kind"] == "valu" and p["c"] & d["w"]:
                    need = 3
            elif p["kind"] == "valu":
                if d["kind"] == "mfma" and p["w"] & (d["rd"] | d["c"]):
                    need = 2
                elif d["kind"] == "valu" and p.get("trans") and not d.get("trans") and p["w"] & d["rd"]:
                    need = 1
                elif d["op"].startswith("v_permlane") and p["w"] & d["rd"]:
                    need = 2
                elif d["op"].startswith("v_readfirstlane") and p["w"] & d["rd"]:
                    need = 1
            elif p["kind"] == "store":
                if p["data"] & d["w"]:
                    need = 2
            elif p["m0w"] and d["kind"] == "dma":
                need = 1
            if dist < need:
                print(f"HAZARD need {need} have {dist}:\n   {y}\n   {x}", file=sys.stderr)
                bad += 1
            dist += p["ws"]
    assert bad == 0


if __name__ == "__main__":
    opt = {}
    out = sys.argv[1]
    for kv in sys.argv[2:]:
        k, v = kv.split("=", 1)
        try:
            v = eval(v)
        except Exception:
            pass
        opt[k] = v
    g = Gen(opt)
    t = g.text()
    open(out, "w").write(t)
    G = g.gaps
    print(f"{out}: max vm outstanding {g.maxout}, scale ends slot {G[g.scale_end].slot}, drain1 ends at slot {G[g.drain1_end].slot}, tail instrs {len(G[-1].v)}, "
          f"free units job1 {sum(x.free_v() for x in G if x.slot < J2)}, job2 {sum(x.free_v() for x in G[:-1] if x.slot >= J2)}", file=sys.stderr)
```

```python
import sys, re, struct, math

KN = "standalone__mha_softmax__near_ridge_kernel"

vTID = 0
vQO = 1
vDK, vDV = 2, 3
vKA = [4, 5, 6]
vVA = [7, 8, 9]
vR = 10
vS = 16
vP = 32
vT = 40
vO1 = 64
vQ1 = 160
aO1 = 0
aK = 96
aV = 128
aQ2 = 160
aL = 224
aONE = 248

sQ, sK, sV, sO = 16, 20, 24, 28
sW4K = 32
sTMP = 33
sC = 34
sMASK = 35
sLO, sRNG = 38, 39
sFLAG = 40
sROW = 44
sUNIT = 56

C_SCALE = struct.unpack("<I", struct.pack("<f", math.log2(math.e) / math.sqrt(128.0)))[0]
L_LO = (127 - 40) << 23
L_HI = (127 + 60) << 23

NT1, NT2 = 6, 4
NITEM = 16 * NT1 + 16 * NT2
J2 = 16 * NT1


def item(i):
    if i < J2:
        return 0, i // NT1, i % NT1
    return 1, 16 + (i - J2) // NT2, (i - J2) % NT2


def first(t):
    return t * NT1 if t <= 16 else J2 + (t - 16) * NT2


def unit_of(t):
    return t if t < 16 else (t - 10 if t < 26 else t - 26)


def r(cls, lo, n=1):
    return f"{cls}{lo}" if n == 1 else f"{cls}[{lo}:{lo+n-1}]"


def Qreg(job, j, ks):
    return r("v", vQ1 + 16 * j + 4 * ks, 4) if job == 0 else r("a", aQ2 + 16 * j + 4 * ks, 4)


def Obase(job, j):
    if job == 0:
        return ("v", vO1 + 32 * j) if j < 3 else ("a", aO1 + 32 * (j - 3))
    return ("v", vQ1 + 32 * j) if j < 3 else ("v", vO1)


class Gap:
    def __init__(self, mfma, slot, g):
        self.mfma = mfma
        self.slot, self.g = slot, g
        self.s, self.m, self.v = [], [], []
        self.units = 0
        self.pre = []
        self.locked = False

    def free_v(self):
        return 0 if self.locked else min(2 - self.units, 3 - self.units - len(self.s))

    def free_s(self):
        return 0 if self.locked else (3 - self.units - len(self.s) if self.s else 1)


class Gen:
    def __init__(self, opt):
        self.o = dict(ldflag="nt", qflag="nt", stflag="", reflag="nt", stamps=False, prefetch=True,
                      q2pos=(4, 7, 9, 12), slow=True, look=2, nstart=3,
                      start="K0 Q0 Q1|V0 Q2|Q3|Q4|K1 Q5|V1|U2", b1="K1")
        self.o.update(opt)
        self.gaps = []
        self.idx = {}

    def build_gaps(self):
        M = "v_mfma_f32_16x16x32_bf16"
        for s in range(-1, NITEM + 1):
            if s + 1 < NITEM:
                job, t, j = item(s + 1)
                S = vS + 8 * ((s + 1) & 1)
                for f in range(8):
                    kb, ks = f >> 2, f & 3
                    d = r("v", S + 4 * kb, 4)
                    c = "0" if ks == 0 else d
                    self.add(f"{M} {d}, {r('a', aK+4*f, 4)}, {Qreg(job, j, ks)}, {c}", s, f)
            if s - 1 >= 0:
                job, t, j = item(s - 1)
                P = r("v", vP + 4 * ((s - 1) & 1), 4)
                cls, ob = Obase(job, j)
                z = t in (0, 16)
                for f in range(8):
                    d = r(cls, ob + 4 * f, 4)
                    self.add(f"{M} {d}, {r('a', aV+4*f, 4)}, {P}, {'0' if z else d}", s, 8 + f)
                d = r("a", aL + 4 * j, 4)
                self.add(f"{M} {d}, {r('a', aONE, 4)}, {P}, {'0' if z else d}", s, 16)
        self.add(None, NITEM + 1, 0)

    def add(self, mfma, slot, g):
        self.idx[(slot, g)] = len(self.gaps)
        self.gaps.append(Gap(mfma, slot, g))

    def at(self, slot, g):
        while (slot, g) not in self.idx:
            g += 1
            if g > 16:
                slot, g = slot + 1, 0
        return self.idx[(slot, g)]

    def place(self, text, kind, units, lo, hi=None, what=""):
        n = len(self.gaps) - 1
        k = lo
        while True:
            gp = self.gaps[k]
            if k == n:
                break
            if kind == "s":
                if gp.free_s() >= 1:
                    break
            elif gp.free_v() >= units:
                break
            k += 1
        if hi is not None and k > hi:
            raise Exception(f"deadline miss {what or text}: lo={lo} hi={hi} got {k}")
        if k == n:
            gp.v.append(text)
        elif kind == "s":
            gp.s.append(text)
        else:
            (gp.m if kind == "m" else gp.v).append(text)
            gp.units += units
        return k

    def stream(self, ops, lo, hi=None, what=""):
        k = lo
        prevkind = None
        rank = {"s": 0, "m": 1, "v": 2}
        for text, kind, units, sep in ops:
            start = k + sep
            if prevkind is not None and sep == 0 and rank[kind] < rank[prevkind]:
                start = k + 1
            start = min(start, len(self.gaps) - 1)
            k = self.place(text, kind, units, start, hi, what)
            prevkind = kind
        return k

    def place_softmax(self):
        for i in range(NITEM):
            S = vS + 8 * (i & 1)
            P = vP + 4 * (i & 1)
            lo = self.at(i, 0)
            if i == 0 or i == NITEM - 1:
                ops = []
                for e in range(8):
                    ops.append((f"v_exp_f32 v{S+e}, v{S+e}", "v", 2, 0))
                    if e & 1:
                        ops.append((f"v_cvt_pk_bf16_f32 v{P+e//2}, v{S+e-1}, v{S+e}", "v", 1, 1))
                if i == 0:
                    self.sm0 = [x[0] for x in ops if "exp" in x[0]] + ["s_nop 0"] + [x[0] for x in ops if "cvt" in x[0]]
                else:
                    self.smlast = [x[0] for x in ops]
                continue
            for e in range(8):
                k = self.idx[(i, 2 * e)]
                self.place(f"v_exp_f32 v{S+e}, v{S+e}", "v", 2, k, k)
                if e & 1:
                    k = self.idx[(i, 2 * e + 1)]
                    self.place(f"v_cvt_pk_bf16_f32 v{P+e//2}, v{S+e-1}, v{S+e}", "v", 1, k, k)

    def kread(self, t, f):
        sl = t % 10
        kb, ks = f >> 2, f & 3
        return f"ds_read_b128 {r('a', aK+4*f, 4)}, v{vKA[sl//4]} offset:{(sl%4)*16384 + kb*8192 + ks*256}"

    def vread(self, t, f, h):
        sl = t % 10
        u, e = f >> 1, f & 1
        return f"ds_read_b64_tr_b16 {r('a', aV+4*f+2*h, 2)}, v{vVA[sl//4]} offset:{(sl%4)*16384 + h*8192 + u*256 + e*8}"

    def place_reads(self):
        self.need = {}
        for t in range(1, 32):
            s = first(t) - 2
            for f in range(8):
                lo = self.idx[(s, f)]
                use = self.idx[(s + 1, f)]
                txt = self.kread(t, f)
                self.place(txt, "m", 1, lo, use - 5, "kread")
                self.need.setdefault(use, []).append(txt)
        for t in range(0, 32):
            s = first(t)
            for f in range(8):
                use = self.idx[(s + 1, 8 + f)]
                lo = self.idx[(s, 8 + f)] if t > 0 else self.idx[(1, 0)]
                for h in range(2):
                    txt = self.vread(t, f, h)
                    if t == 0:
                        self.v0reads.append(txt)
                    else:
                        self.place(txt, "m", 1, lo, use - 5, "vread")
                        self.need.setdefault(use, []).append(txt)

    def dma(self, t, which):
        u = unit_of(t)
        fl = self.o["ldflag"] if t < 16 else self.o["reflag"]
        if t < 6 and self.o.get("keepflag") is not None:
            fl = self.o["keepflag"]
        out = []
        if "k" in which:
            out += [f"buffer_load_dwordx4 v{vDK}, s[{sK}:{sK+3}], s{sUNIT+u} offen offset:{o} {fl} lds ; K{t}" for o in (0, 1024)]
        if "v" in which:
            out += [f"buffer_load_dwordx4 v{vDV}, s[{sV}:{sV+3}], s{sUNIT+u} offen offset:{o} {fl} lds ; V{t}" for o in (2048, 3072)]
        return out

    def m0(self, t):
        return f"s_add_u32 m0, s{sW4K}, {(t % 10) * 16384}"

    def qload(self, job, j):
        return [f"buffer_load_dwordx4 {Qreg(job, j, ks)}, v{vQO}, s[{sQ}:{sQ+3}], s{sROW + job*NT1 + j} offen offset:{ks*64} {self.o['qflag']} ; Q{job}_{j}"
                for ks in range(4)]

    def scale_v(self, j):
        out = []
        for k in range(16):
            q = vQ1 + 16 * j + k
            a, b = vT + 2 * (k & 1), vT + 2 * (k & 1) + 1
            out += [f"v_lshlrev_b32 v{a}, 16, v{q}", f"v_and_b32 v{b}, s{sMASK}, v{q}",
                    f"v_mul_f32 v{a}, s{sC}, v{a}", f"v_mul_f32 v{b}, s{sC}, v{b}",
                    f"v_cvt_pk_bf16_f32 v{q}, v{a}, v{b}"]
        return out

    def scale_a(self, j):
        out = []
        for k in range(16):
            q = aQ2 + 16 * j + k
            a, b = vT, vT + 1
            out += [f"v_accvgpr_read_b32 v{b}, a{q}", f"v_lshlrev_b32 v{a}, 16, v{b}", f"v_and_b32 v{b}, s{sMASK}, v{b}",
                    f"v_mul_f32 v{a}, s{sC}, v{a}", f"v_mul_f32 v{b}, s{sC}, v{b}",
                    f"v_cvt_pk_bf16_f32 v{a}, v{a}, v{b}", f"v_accvgpr_write_b32 a{q}, v{a}"]
        return [(x, "v", 1, 0) for x in out]

    def lsum_ops(self, j):
        R = vR + j
        t = vT + 2
        return [(f"v_accvgpr_read_b32 v{R}, a{aL+4*j}", "v", 1, 0),
                (f"v_subrev_u32 v{t}, s{sLO}, v{R}", "v", 1, 0),
                (f"v_cmp_lt_u32 vcc, s{sRNG}, v{t}", "v", 1, 0),
                (f"v_rcp_f32 v{R}, v{R}", "v", 2, 0),
                (f"s_or_b64 s[{sFLAG}:{sFLAG+1}], s[{sFLAG}:{sFLAG+1}], vcc", "s", 0, 1)]

    def drain_ops(self, job, j):
        cls, ob = Obase(job, j)
        R = vR + j
        ops = []
        for u in range(4):
            if cls == "v":
                b = ob + 8 * u
            else:
                b = vT + 8 + 8 * (u & 1)
                for k in range(8):
                    ops.append((f"v_accvgpr_read_b32 v{b+k}, a{ob+8*u+k}", "v", 1, 0))
            for k in range(8):
                ops.append((f"v_mul_f32 v{b+k}, v{R}, v{b+k}", "v", 1, 0))
            for k in range(4):
                ops.append((f"v_cvt_pk_bf16_f32 v{b+k}, v{b+2*k}, v{b+2*k+1}", "v", 1, 0))
            ops.append((f"buffer_store_dwordx4 {r('v', b, 4)}, v{vQO}, s[{sO}:{sO+3}], s{sROW + job*NT1 + j} offen offset:{u*64} {self.o['stflag']} ; O{job}_{j}", "m", 2, 1))
        return ops

    def barrier_gap(self, t):
        return self.at(first(t) - 3, 16)

    def schedule(self):
        o = self.o
        self.v0reads = []
        self.build_gaps()
        G = self.gaps
        self.bars = {}
        bar_ts = list(range(1, 16)) + [19, 22, 26, 29]
        for t in bar_ts:
            k = self.barrier_gap(t)
            self.bars[t] = k
            tag = {26: "V28", 29: "V31", 1: o["b1"]}.get(t, f"V{t}" if t < 16 else None)
            G[k].s.append(f"@VMWAIT {tag}" if tag else "s_nop 0")
            G[k].s.append("s_barrier")
            G[k].locked = True
        if o["b1"] == "K1":
            k = self.idx[(first(1) - 1, 16)]
            G[k].s += ["@VMWAIT V1", "s_barrier"]
            G[k].locked = True
        self.place_softmax()
        self.place_reads()
        def grp(names):
            out = []
            for nm in names:
                if nm[0] == "Q":
                    out += self.qload(0, int(nm[1:]))
                else:
                    out += [self.m0(int(nm[1:])), "s_nop 0"] + self.dma(int(nm[1:]), {"K": "k", "V": "v", "U": "kv"}[nm[0]])
            return out
        st = [x.split() for x in o["start"].split("|")]
        self.init_groups = grp(st[0])
        G[self.idx[(-1, 0)]].pre += (["@VMWAIT Q0_0"] + grp(st[1]) + self.scale_v(0) + ["@VMWAIT K0", "s_barrier"] +
                                     [self.kread(0, f) for f in range(8)] + ["s_waitcnt lgkmcnt(0)"])
        G[self.idx[(0, 0)]].pre += ["@VMWAIT Q0_1"] + grp(st[2]) + self.scale_v(1) + ["s_nop 1"]
        G[self.idx[(1, 0)]].pre += (self.sm0 + ["@VMWAIT V0", "s_barrier"] + self.v0reads +
                                    ["@VMWAIT Q0_2"] + grp(st[3]) + self.scale_v(2) + ["s_waitcnt lgkmcnt(0)"])
        for j in range(3, NT1):
            G[self.idx[(j - 1, 0)]].pre += [f"@VMWAIT Q0_{j}"] + grp(st[j + 1]) + self.scale_v(j) + ["s_nop 1"]
        self.insert_lgkm_waits()
        q2 = {p: n for n, p in enumerate(o["q2pos"])}
        look = o["look"]
        k = 0
        for t in range(o["nstart"], 16):
            bt = max(1, t - look, t - 9)
            lo = max(k + 1, self.bars[bt] + 1)
            if t in q2:
                k = self.stream([(x, "m", 2, 1) for x in self.qload(1, q2[t])], lo, what="q2")
                lo = k + 1
            ops = [(self.m0(t), "s", 0, 0)] + [(x, "m", 2, 1) for x in self.dma(t, "kv")]
            k = self.stream(ops, lo, what=f"u{t}")
        for bt, ts in ((19, (26, 27, 28)), (22, (29, 30, 31))):
            k = self.bars[bt] + 1
            for t in ts:
                ops = [(self.m0(t), "s", 0, 0)] + [(x, "m", 2, 1) for x in self.dma(t, "kv")]
                k = self.stream(ops, k, what=f"re{t}") + 1
        k = 0
        for n in range(NT2):
            lo = max(k, self.bars[o["q2pos"][n]] + 1)
            hi = self.idx[(J2 + n - 1, 0)] - 2
            k = self.stream(self.scale_a(n), lo, hi, f"scale{n}")
        self.scale_end = k
        lend = {}
        k = 0
        for j in range(NT1):
            fin = self.idx[(first(15) + j + 1, 16)]
            hi = self.idx[(first(16) + j + 1, 16)] - 2 if j < NT2 else None
            k = self.stream(self.lsum_ops(j)[:1], max(k, fin + 5), hi, "lsum")
            lend[j] = k
        k = 0
        for j in range(NT1):
            hi = self.idx[(J2 + 3 + 1, 8)] - 2 if j == 0 else None
            k = self.stream(self.lsum_ops(j)[1:], max(k, lend[j]), hi, f"lrest{j}")
            k = self.stream(self.drain_ops(0, j), k, hi, f"drain{j}")
        self.drain1_end = k
        kk = self.at(NITEM - 1, 0)
        ops = []
        S = vS + 8 * ((NITEM - 1) & 1)
        for x in self.smlast:
            ops.append((x, "v", 2 if "exp" in x else 1, 0 if "exp" in x else 1))
        placed = 0
        lastg = self.idx[(NITEM, 8)]
        rest = []
        kcur = kk
        for op in ops:
            ok = False
            if not rest:
                kt = kcur + op[3]
                while kt < lastg and G[kt].free_v() < op[2]:
                    kt += 1
                if kt < lastg:
                    self.place(op[0], "v", op[2], kt, kt)
                    kcur = kt
                    ok = True
            if not ok:
                rest.append(op[0])
        G[lastg].pre += [x for x in rest if "exp" in x] + ["s_nop 0"] + [x for x in rest if "cvt" in x] + ["s_nop 1"]
        k = max(k, 0)
        for j in range(NT2):
            fin = self.idx[(first(31) + j + 1, 16)]
            if j == NT2 - 1:
                self.gaps[-1].v.append("s_nop 7")
                lo = len(G) - 1
            else:
                lo = fin + 5
            k = self.stream(self.lsum_ops(j), max(k, min(lo, len(G) - 1)), None, "lsum2")
            if k == len(G) - 1:
                self.gaps[-1].v.append("s_nop 0")
            k = self.stream(self.drain_ops(1, j), min(k + 1, len(G) - 1), None, "drain2")

    def insert_lgkm_waits(self):
        G = self.gaps
        issued = []
        done = 0
        for k, gp in enumerate(G):
            for x in gp.pre:
                if x.startswith("ds_"):
                    issued.append(x)
                if x.startswith("s_waitcnt lgkmcnt(0)"):
                    done = len(issued)
            nd = self.need.get(k + 1, [])
            if nd:
                pos = max(len(issued) - 1 - issued[::-1].index(x) for x in nd)
                if pos >= done:
                    n = len(issued) - 1 - pos
                    assert n <= 15
                    w = f"s_waitcnt lgkmcnt({n})"
                    if gp.locked:
                        gp.s.insert(0, w)
                    else:
                        if gp.free_s() < 1:
                            print(f"; note: gap {gp.slot},{gp.g} overfull by lgkm wait", file=sys.stderr)
                        gp.s.insert(0, w)
                    done = pos + 1
            for x in gp.m:
                if x.startswith("ds_"):
                    issued.append(x)

    def prologue(self):
        o = self.o
        L = []
        a = L.append
        if o["stamps"]:
            a("s_memrealtime s[90:91]"); a("s_memtime s[92:93]")
        a("s_cmp_ge_u32 s2, 256")
        a("s_cbranch_scc1 L_exit")
        a("s_load_dwordx8 s[4:11], s[0:1], 0")
        if o["stamps"]:
            a("s_load_dwordx4 s[12:15], s[0:1], 32")
        a(f"v_lshrrev_b32 v10, 6, v0              ; wave")
        a(f"v_and_b32 v11, 63, v0                 ; lane")
        a(f"v_readfirstlane_b32 s{sTMP}, v10")
        a(f"v_and_b32 v12, 15, v0                 ; i")
        a(f"v_lshrrev_b32 v13, 4, v11             ; g")
        a(f"v_and_b32 v14, 3, v0                  ; lane&3")
        a(f"v_bfe_u32 v15, v0, 2, 2               ; (lane>>2)&3")
        a(f"s_lshl_b32 s{sW4K}, s{sTMP}, 12")
        a(f"v_lshlrev_b32 v{vQO}, 8, v12")
        a(f"v_lshl_add_u32 v{vQO}, v13, 4, v{vQO}")
        a(f"v_lshl_add_u32 v{vQO}, v10, 12, v{vQO}")
        a(f"v_lshlrev_b32 v16, 1, v10")
        a(f"v_and_b32 v16, 2, v16")
        a(f"v_xor_b32 v16, v16, v15")
        a(f"v_lshlrev_b32 v17, 11, v10")
        a(f"v_lshl_add_u32 v17, v13, 6, v17       ; w*2048 + g*64")
        a(f"v_lshl_add_u32 v{vDK}, v14, 8, v17")
        a(f"v_lshl_add_u32 v{vDK}, v16, 4, v{vDK}")
        a(f"v_lshl_add_u32 v{vDV}, v15, 8, v17")
        a(f"v_lshl_add_u32 v{vDV}, v14, 4, v{vDV}")
        a(f"s_mul_i32 s{sTMP}, s2, 155648")
        a(f"s_lshl_b32 s3, s2, 17")
        a(f"s_mov_b32 s{sK+2}, 131072")
        a(f"s_mov_b32 s{sK+3}, 0x20000")
        a(f"s_mov_b32 s{sQ+2}, 155648")
        a(f"s_mov_b32 s{sQ+3}, 0x20000")
        a(f"s_mov_b32 s{sV+2}, {131072+2048}")
        a(f"s_mov_b32 s{sV+3}, 0x20000")
        a(f"s_mov_b32 s{sO+2}, 155648")
        a(f"s_mov_b32 s{sO+3}, 0x20000")
        for u in range(16):
            a(f"s_mov_b32 s{sUNIT+u}, {u*8192}")
        for j in range(NT1 + NT2):
            a(f"s_mov_b32 s{sROW+j}, {j*16384}")
        if o["prefetch"]:
            a("s_getpc_b64 s[72:73]")
            a("L_pc:")
            a("s_lshr_b32 s74, s2, 3")
            a("s_and_b32 s74, s74, 31")
            a("s_lshl_b32 s74, s74, 11")
            a("v_lshlrev_b32 v18, 9, v10")
            a("v_lshl_add_u32 v18, v14, 7, v18")
            a("v_add_u32 v18, s74, v18")
            a("v_min_u32 v18, L_codeend-L_pc-4, v18")
            a(f"global_load_dword v{vT+23}, v18, s[72:73] ; PF")
        a("s_waitcnt lgkmcnt(0)")
        a(f"s_add_u32 s{sK}, s6, s3")
        a(f"s_addc_u32 s{sK+1}, s7, 0")
        a(f"s_add_u32 s{sQ}, s4, s{sTMP}")
        a(f"s_addc_u32 s{sQ+1}, s5, 0")
        a(f"s_add_u32 s{sV}, s8, s3")
        a(f"s_addc_u32 s{sV+1}, s9, 0")
        a(f"s_sub_u32 s{sV}, s{sV}, 2048")
        a(f"s_subb_u32 s{sV+1}, s{sV+1}, 0")
        L += self.init_groups
        a(f"s_add_u32 s{sO}, s10, s{sTMP}")
        a(f"s_addc_u32 s{sO+1}, s11, 0")
        a(f"v_lshrrev_b32 v16, 1, v15")
        a(f"v_and_b32 v17, 1, v15")
        a(f"v_lshlrev_b32 v18, 12, v16")
        a(f"v_lshl_add_u32 v18, v17, 10, v18")
        a(f"v_and_b32 v16, 2, v15")
        a(f"v_xor_b32 v16, v16, v13")
        a(f"v_lshl_add_u32 v18, v16, 6, v18")
        a(f"v_lshl_add_u32 v{vKA[0]}, v14, 4, v18")
        a(f"v_add_u32 v{vKA[1]}, 0x10000, v{vKA[0]}")
        a(f"v_add_u32 v{vKA[2]}, 0x20000, v{vKA[0]}")
        a(f"v_lshrrev_b32 v16, 1, v13")
        a(f"v_and_b32 v17, 1, v13")
        a(f"v_lshlrev_b32 v18, 12, v16")
        a(f"v_lshl_add_u32 v18, v17, 10, v18")
        a(f"v_lshl_add_u32 v18, v12, 4, v18      ; (i>>2)*64+(i&3)*16 = i*16")
        a(f"v_add_u32 v{vVA[0]}, 2048, v18")
        a(f"v_add_u32 v{vVA[1]}, 0x10000, v{vVA[0]}")
        a(f"v_add_u32 v{vVA[2]}, 0x20000, v{vVA[0]}")
        a(f"v_mov_b32 v16, 0x3f803f80")
        for k in range(4):
            a(f"v_accvgpr_write_b32 a{aONE+k}, v16")
        a(f"s_mov_b32 s{sC}, {C_SCALE:#x}")
        a(f"s_mov_b32 s{sMASK}, 0xffff0000")
        a(f"s_mov_b32 s{sLO}, {L_LO:#x}")
        a(f"s_mov_b32 s{sRNG}, {L_HI-L_LO:#x}")
        a(f"s_mov_b64 s[{sFLAG}:{sFLAG+1}], 0")
        return L

    def linear(self):
        L = self.prologue()
        st = self.o["stamps"]
        for k, gp in enumerate(self.gaps):
            if st and k == self.idx[(4, 0)]:
                L += gp.pre + ["s_memrealtime s[84:85]", "s_memtime s[86:87]"]
            elif st and k == self.idx[(J2, 0)]:
                L += gp.pre + ["s_memrealtime s[82:83]"]
            elif st and gp.mfma is None:
                L += gp.pre + ["s_memrealtime s[88:89]", "s_memtime s[80:81]"]
            else:
                L += gp.pre
            if gp.mfma:
                if gp.g == 0 or (gp.slot >= NITEM - 1 and gp.g == 8):
                    L.append(f"; ---- slot {gp.slot}")
                L.append(gp.mfma)
            L += gp.s + gp.m + gp.v
        out = []
        vm = []
        done = 0
        self.maxout = 0
        for x in L:
            if x.startswith("@VMWAIT"):
                tag = x.split()[1]
                pos = max(n for n, y in enumerate(vm) if y == tag)
                n = len(vm) - 1 - pos
                assert n <= 63, (tag, n)
                if pos >= done:
                    done = pos + 1
                out.append(f"s_waitcnt vmcnt({n})")
                continue
            if x.startswith(("buffer_", "global_")):
                vm.append(x.split(";")[-1].strip())
                self.maxout = max(self.maxout, len(vm) - done)
            out.append(x)
        return out

    def slow_path(self):
        L = []
        a = L.append
        M = "v_mfma_f32_16x16x32_bf16"
        a("L_slow:")
        a("s_waitcnt vmcnt(0)")
        a("v_and_b32 v12, 15, v0")
        a("v_bfe_u32 v13, v0, 4, 2")
        a("v_lshlrev_b32 v2, 8, v12")
        a("v_lshl_add_u32 v2, v13, 4, v2           ; K offset")
        a("v_lshlrev_b32 v3, 1, v12")
        a("v_lshl_add_u32 v3, v13, 10, v3")
        a("v_add_u32 v3, 2048, v3")
        a("v_lshlrev_b32 v4, 8, v12")
        a("v_lshl_add_u32 v4, v13, 3, v4")
        a(f"v_add_u32 v4, s{sW4K}, v4")
        a("s_mov_b32 s76, 0")
        a("L_slow_sub:")
        for ks in range(4):
            a(f"buffer_load_dwordx4 v[{64+4*ks}:{67+4*ks}], v{vQO}, s[{sQ}:{sQ+3}], s76 offen offset:{ks*64}")
        a("v_mov_b32 v5, 0xff800000")
        a("s_mov_b32 s77, 0")
        a("L_slow_max:")
        for pas in range(2):
            if pas == 1:
                a("v_mov_b32 v6, v5")
                a("s_nop 1")
                a("v_permlane32_swap_b32 v5, v6")
                a("s_nop 1")
                a("v_max_f32 v5, v5, v6")
                a("v_mov_b32 v6, v5")
                a("s_nop 1")
                a("v_permlane16_swap_b32 v5, v6")
                a("s_nop 1")
                a("v_max_f32 v5, v5, v6")
                a(f"v_mul_f32 v5, s{sC}, v5")
                a("v_mov_b32 v7, 0")
                for k in range(32):
                    a(f"v_mov_b32 v{96+k}, 0")
                a("s_mov_b32 s77, 0")
                a("L_slow_pv:")
            a("s_add_u32 s78, s77, 4096")
            for f in range(8):
                a(f"buffer_load_dwordx4 v[{128+4*f}:{131+4*f}], v2, s[{sK}:{sK+3}], s{77 + (f >> 2)} offen offset:{(f & 3)*64}")
            if pas == 1:
                for f in range(8):
                    for jj in range(8):
                        a(f"buffer_load_ushort v{160+8*f+jj}, v3, s[{sV}:{sV+3}], s{77 + (jj >> 2)} offen offset:{(jj & 3)*256 + f*32}")
                    if f == 3:
                        a("s_waitcnt vmcnt(16)")
            a("s_waitcnt vmcnt(0)")
            for f in range(8):
                kb, ks = f >> 2, f & 3
                d = f"v[{16+4*kb}:{19+4*kb}]"
                a(f"{M} {d}, v[{128+4*f}:{131+4*f}], v[{64+4*ks}:{67+4*ks}], {'0' if ks == 0 else d}")
            a("s_nop 7")
            a("s_nop 1")
            if pas == 0:
                for k in range(0, 8, 2):
                    a(f"v_max3_f32 v5, v5, v{16+k}, v{17+k}")
                a("s_add_u32 s77, s77, 8192")
                a("s_cmp_lt_u32 s77, 131072")
                a("s_cbranch_scc1 L_slow_max")
            else:
                for k in range(8):
                    a(f"v_fma_f32 v{16+k}, v{16+k}, s{sC}, -v5")
                for k in range(8):
                    a(f"v_exp_f32 v{16+k}, v{16+k}")
                a("s_nop 0")
                for k in range(8):
                    a(f"v_add_f32 v7, v7, v{16+k}")
                for k in range(4):
                    a(f"v_cvt_pk_bf16_f32 v{32+k}, v{16+2*k}, v{17+2*k}")
                for k in range(32):
                    a(f"v_lshl_or_b32 v{224+k}, v{161+2*k}, 16, v{160+2*k}")
                a("s_nop 1")
                for f in range(8):
                    d = f"v[{96+4*f}:{99+4*f}]"
                    a(f"{M} {d}, v[{224+4*f}:{227+4*f}], v[32:35], {d}")
                a("s_add_u32 s77, s77, 8192")
                a("s_cmp_lt_u32 s77, 131072")
                a("s_cbranch_scc1 L_slow_pv")
        a("v_mov_b32 v6, v7")
        a("s_nop 1")
        a("v_permlane32_swap_b32 v7, v6")
        a("s_nop 1")
        a("v_add_f32 v7, v7, v6")
        a("v_mov_b32 v6, v7")
        a("s_nop 1")
        a("v_permlane16_swap_b32 v7, v6")
        a("s_nop 1")
        a("v_add_f32 v7, v7, v6")
        a("v_rcp_f32 v7, v7")
        a("s_nop 7")
        for k in range(32):
            a(f"v_mul_f32 v{96+k}, v7, v{96+k}")
        for k in range(16):
            a(f"v_cvt_pk_bf16_f32 v{128+k}, v{96+2*k}, v{97+2*k}")
        for f in range(8):
            a(f"buffer_store_dwordx2 v[{128+2*f}:{129+2*f}], v4, s[{sO}:{sO+3}], s76 offen offset:{f*32}")
        a("s_waitcnt vmcnt(0)")
        a("s_add_u32 s76, s76, 16384")
        a(f"s_cmp_lt_u32 s76, {16384*(NT1+NT2)}")
        a("s_cbranch_scc1 L_slow_sub")
        return L

    def stamp_out(self):
        if self.o["stamps"] == "dbg":
            L = ["s_waitcnt vmcnt(0) lgkmcnt(0)", "s_memrealtime s[94:95]", "s_memtime s[96:97]", "s_waitcnt lgkmcnt(0)",
                 "s_mov_b32 s76, s12", "s_mov_b32 s77, s13", "s_mov_b32 s78, 256", "s_mov_b32 s79, 0x20000",
                 "v_and_b32 v2, 63, v0", "v_lshlrev_b32 v1, 2, v2", "v_mov_b32 v4, 0"]
            for n, sr in enumerate([90, 84, 82, 88, 94]):
                L += [f"s_not_b32 s3, s{sr}", f"v_writelane_b32 v4, s3, {2*n}", f"v_writelane_b32 v4, s{sr}, {2*n+1}"]
            L += ["s_sub_u32 s3, s80, s86", "v_writelane_b32 v4, s3, 10", "s_not_b32 s3, s3", "v_writelane_b32 v4, s3, 12", "s_sub_u32 s3, s96, s92", "v_writelane_b32 v4, s3, 11"]
            L += ["v_cmp_gt_u32 vcc, 16, v2", "s_and_saveexec_b64 s[98:99], vcc", "buffer_atomic_umax v4, v1, s[76:79], 0 offen"]
            return L
        L = ["s_waitcnt vmcnt(0) lgkmcnt(0)", "s_memrealtime s[94:95]", "s_memtime s[96:97]", "s_waitcnt lgkmcnt(0)",
             "s_mov_b32 s76, s14", "s_mov_b32 s77, s15", "s_mov_b32 s78, 0x1000000", "s_mov_b32 s79, 0x20000",
             "v_lshrrev_b32 v1, 6, v0", "v_lshlrev_b32 v1, 6, v1", "s_lshl_b32 s3, s2, 8", "v_add_u32 v1, s3, v1"]
        for n, s in enumerate([90, 91, 92, 93, 94, 95, 96, 97, 84, 85, 86, 82, 88, 89, 80, 81]):
            L.append(f"v_mov_b32 v{4+n}, s{s}")
        L += ["v_and_b32 v2, 63, v0", "v_cmp_eq_u32 vcc, 0, v2", "s_and_saveexec_b64 s[98:99], vcc"]
        for n in range(4):
            L.append(f"buffer_store_dwordx4 v[{4+4*n}:{7+4*n}], v1, s[76:79], 0 offen offset:{16*n}")
        return L

    def text(self):
        self.schedule()
        body = self.linear()
        verify(body)
        tail = [f"s_cmp_lg_u64 s[{sFLAG}:{sFLAG+1}], 0", "s_cbranch_scc1 L_slow"] if self.o["slow"] else []
        if self.o.get("forceslow"):
            tail = ["s_branch L_slow"]
        tail += ["L_done:"]
        if self.o["stamps"]:
            tail += self.stamp_out()
        tail += ["L_exit:", "s_endpgm", "L_codeend:"]
        if self.o["slow"]:
            sp = self.slow_path()
            verify(sp)
            tail += sp + ["s_branch L_done"]
        hdr = open("header.txt").read()
        fmt = lambda x: (x if x.endswith(":") or x.startswith(";") else "    " + x)
        return (hdr + f""".amdgcn_target "amdgcn-amd-amdhsa--gfx950"
.text
.globl {KN}
.p2align 8
.type {KN},@function
{KN}:
""" + "\n".join(fmt(x) for x in body + tail) + f"""
.section .rodata,"a"
.p2align 6
.amdhsa_kernel {KN}
  .amdhsa_next_free_vgpr 512
  .amdhsa_next_free_sgpr 102
  .amdhsa_accum_offset 256
  .amdhsa_group_segment_fixed_size 0
  .amdhsa_kernarg_size 48
  .amdhsa_user_sgpr_count 2
  .amdhsa_user_sgpr_kernarg_segment_ptr 1
  .amdhsa_system_sgpr_workgroup_id_x 1
.end_amdhsa_kernel
""")


def regs(tok):
    tok = tok.strip().lstrip("-")
    m = re.fullmatch(r"([va])(\d+)", tok)
    if m:
        return {(m.group(1), int(m.group(2)))}
    m = re.fullmatch(r"([va])\[(\d+):(\d+)\]", tok)
    if m:
        return {(m.group(1), k) for k in range(int(m.group(2)), int(m.group(3)) + 1)}
    return set()


def parse(x):
    x = x.split(";")[0].strip()
    if not x or x.endswith(":"):
        return None
    op, _, rest = x.partition(" ")
    ops = [t.strip() for t in rest.split(",")]
    last = ops[-1].split()
    if last:
        ops[-1] = last[0]
    d = dict(op=op, w=set(), rd=set(), kind="s", c=set(), ws=1, m0w=False)
    if op == "s_nop":
        d["ws"] = int(ops[0]) + 1
    if op.startswith("s_") and ops and ops[0] == "m0":
        d["m0w"] = True
    if op.startswith("v_mfma"):
        d.update(kind="mfma", w=regs(ops[0]), rd=regs(ops[1]) | regs(ops[2]), c=regs(ops[3]))
    elif op.startswith("v_"):
        d["kind"] = "valu"
        if op.startswith("v_cmp") or op.startswith("v_readfirstlane"):
            d["rd"] = set().union(*[regs(t) for t in ops[1:]])
        elif op.startswith("v_permlane"):
            d["w"] = regs(ops[0]) | regs(ops[1]); d["rd"] = set(d["w"])
        else:
            d["w"] = regs(ops[0]); d["rd"] = set().union(*[regs(t) for t in ops[1:]])
        d["trans"] = op.startswith(("v_exp", "v_rcp"))
    elif op.startswith("ds_read"):
        d.update(kind="ds", w=regs(ops[0]), rd=regs(ops[1]))
    elif op.startswith("buffer_store"):
        d.update(kind="store", rd=regs(ops[0]) | regs(ops[1]), data=regs(ops[0]))
    elif op.startswith(("buffer_load", "global_load")):
        if " lds" in x:
            d.update(kind="dma", rd=regs(ops[0]))
        else:
            d.update(kind="load", w=regs(ops[0]), rd=regs(ops[1]))
    return d


def verify(L):
    ins = [(x, parse(x)) for x in L]
    ins = [(x, d) for x, d in ins if d]
    bad = 0
    for n, (x, d) in enumerate(ins):
        dist = 0
        for m in range(n - 1, max(-1, n - 14), -1):
            y, p = ins[m]
            need = 0
            if p["kind"] == "mfma":
                if d["kind"] == "mfma":
                    if p["w"] & d["rd"]:
                        need = 8
                    elif p["w"] & d["c"] and p["w"] != d["c"]:
                        need = 6
                    elif p["w"] & d["w"] and p["w"] != d["w"]:
                        need = 6
                elif p["w"] & (d["rd"] | d["w"]):
                    need = 8
                elif d["kind"] == "valu" and p["c"] & d["w"]:
                    need = 3
            elif p["kind"] == "valu":
                if d["kind"] == "mfma" and p["w"] & (d["rd"] | d["c"]):
                    need = 2
                elif d["kind"] == "valu" and p.get("trans") and not d.get("trans") and p["w"] & d["rd"]:
                    need = 1
                elif d["op"].startswith("v_permlane") and p["w"] & d["rd"]:
                    need = 2
                elif d["op"].startswith("v_readfirstlane") and p["w"] & d["rd"]:
                    need = 1
            elif p["kind"] == "store":
                if p["data"] & d["w"]:
                    need = 2
            elif p["m0w"] and d["kind"] == "dma":
                need = 1
            if dist < need:
                print(f"HAZARD need {need} have {dist}:\n   {y}\n   {x}", file=sys.stderr)
                bad += 1
            dist += p["ws"]
    assert bad == 0


if __name__ == "__main__":
    opt = {}
    out = sys.argv[1]
    for kv in sys.argv[2:]:
        k, v = kv.split("=", 1)
        try:
            v = eval(v)
        except Exception:
            pass
        opt[k] = v
    g = Gen(opt)
    t = g.text()
    open(out, "w").write(t)
    G = g.gaps
    print(f"{out}: max vm outstanding {g.maxout}, scale ends slot {G[g.scale_end].slot}, drain1 ends at slot {G[g.drain1_end].slot}, tail instrs {len(G[-1].v)}, "
          f"free units job1 {sum(x.free_v() for x in G if x.slot < J2)}, job2 {sum(x.free_v() for x in G[:-1] if x.slot >= J2)}", file=sys.stderr)
```

```python
import sys, re, struct, math

KN = "standalone__mha_softmax__near_ridge_kernel"

vTID = 0
vQO = 1
vDK, vDV = 2, 3
vKA = [4, 5, 6]
vVA = [7, 8, 9]
vR = 10
vS = 16
vP = 32
vT = 40
vO1 = 64
vQ1 = 160
aO1 = 0
aK = 96
aV = 128
aQ2 = 160
aL = 224
aONE = 248

sQ, sK, sV, sO = 16, 20, 24, 28
sW4K = 32
sTMP = 33
sC = 34
sMASK = 35
sLO, sRNG = 38, 39
sFLAG = 40
sROW = 44
sUNIT = 56

C_SCALE = struct.unpack("<I", struct.pack("<f", math.log2(math.e) / math.sqrt(128.0)))[0]
L_LO = (127 - 40) << 23
L_HI = (127 + 60) << 23

NT1, NT2 = 6, 4
NITEM = 16 * NT1 + 16 * NT2
J2 = 16 * NT1


def item(i):
    if i < J2:
        return 0, i // NT1, i % NT1
    return 1, 16 + (i - J2) // NT2, (i - J2) % NT2


def first(t):
    return t * NT1 if t <= 16 else J2 + (t - 16) * NT2


def unit_of(t):
    return t if t < 16 else (t - 10 if t < 26 else t - 26)


def r(cls, lo, n=1):
    return f"{cls}{lo}" if n == 1 else f"{cls}[{lo}:{lo+n-1}]"


def Qreg(job, j, ks):
    return r("v", vQ1 + 16 * j + 4 * ks, 4) if job == 0 else r("a", aQ2 + 16 * j + 4 * ks, 4)


def Obase(job, j):
    if job == 0:
        return ("v", vO1 + 32 * j) if j < 3 else ("a", aO1 + 32 * (j - 3))
    return ("v", vQ1 + 32 * j) if j < 3 else ("v", vO1)


class Gap:
    def __init__(self, mfma, slot, g):
        self.mfma = mfma
        self.slot, self.g = slot, g
        self.s, self.m, self.v = [], [], []
        self.units = 0
        self.pre = []
        self.locked = False

    def free_v(self):
        return 0 if self.locked else min(2 - self.units, 3 - self.units - len(self.s))

    def free_s(self):
        return 0 if self.locked else (3 - self.units - len(self.s) if self.s else 1)


class Gen:
    def __init__(self, opt):
        self.o = dict(ldflag="nt", qflag="nt", stflag="", reflag="nt", stamps=False, prefetch=True,
                      slow=True, touch=True, b1late=True, space=17, qdelay=14, bar2=(19, 22, 26, 29),
                      sched="5:U4 9:U5 13:U6 17:q0 21:U7 25:U8 29:q1 33:U9 37:U10 41:q2 45:U11 49:U12 53:q3 57:U13 61:U14 65:U15 "
                            "106:U26 110:U27 114:U28 118:U29 122:U30 126:U31",
                      start="K0 Q0 Q1|V0 Q2|Q3|Q4|Q5 K1|V1 U2|U3", b1="K1")
        self.o.update(opt)
        self.gaps = []
        self.idx = {}

    def build_gaps(self):
        M = "v_mfma_f32_16x16x32_bf16"
        for s in range(-1, NITEM + 1):
            if s + 1 < NITEM:
                job, t, j = item(s + 1)
                S = vS + 8 * ((s + 1) & 1)
                for f in range(8):
                    kb, ks = f >> 2, f & 3
                    d = r("v", S + 4 * kb, 4)
                    c = "0" if ks == 0 else d
                    self.add(f"{M} {d}, {r('a', aK+4*f, 4)}, {Qreg(job, j, ks)}, {c}", s, f)
            if s - 1 >= 0:
                job, t, j = item(s - 1)
                P = r("v", vP + 4 * ((s - 1) & 1), 4)
                cls, ob = Obase(job, j)
                z = t in (0, 16)
                for f in range(8):
                    d = r(cls, ob + 4 * f, 4)
                    self.add(f"{M} {d}, {r('a', aV+4*f, 4)}, {P}, {'0' if z else d}", s, 8 + f)
                d = r("a", aL + 4 * j, 4)
                self.add(f"{M} {d}, {r('a', aONE, 4)}, {P}, {'0' if z else d}", s, 16)
        self.add(None, NITEM + 1, 0)

    def add(self, mfma, slot, g):
        self.idx[(slot, g)] = len(self.gaps)
        self.gaps.append(Gap(mfma, slot, g))

    def at(self, slot, g):
        while (slot, g) not in self.idx:
            g += 1
            if g > 16:
                slot, g = slot + 1, 0
        return self.idx[(slot, g)]

    def place(self, text, kind, units, lo, hi=None, what=""):
        n = len(self.gaps) - 1
        k = lo
        while True:
            gp = self.gaps[k]
            if k == n:
                break
            if kind == "s":
                if gp.free_s() >= 1:
                    break
            elif gp.free_v() >= units:
                break
            k += 1
        if hi is not None and k > hi:
            raise Exception(f"deadline miss {what or text}: lo={lo} hi={hi} got {k}")
        if k == n:
            gp.v.append(text)
        elif kind == "s":
            gp.s.append(text)
        else:
            (gp.m if kind == "m" else gp.v).append(text)
            gp.units += units
        return k

    def stream(self, ops, lo, hi=None, what=""):
        k = lo
        prevkind = None
        rank = {"s": 0, "m": 1, "v": 2}
        for text, kind, units, sep in ops:
            start = k + sep
            if prevkind is not None and sep == 0 and rank[kind] < rank[prevkind]:
                start = k + 1
            start = min(start, len(self.gaps) - 1)
            k = self.place(text, kind, units, start, hi, what)
            prevkind = kind
        return k

    def place_softmax(self):
        for i in range(NITEM):
            S = vS + 8 * (i & 1)
            P = vP + 4 * (i & 1)
            lo = self.at(i, 0)
            if i == 0 or i == NITEM - 1:
                ops = []
                for e in range(8):
                    ops.append((f"v_exp_f32 v{S+e}, v{S+e}", "v", 2, 0))
                    if e & 1:
                        ops.append((f"v_cvt_pk_bf16_f32 v{P+e//2}, v{S+e-1}, v{S+e}", "v", 1, 1))
                if i == 0:
                    self.sm0 = [x[0] for x in ops if "exp" in x[0]] + ["s_nop 0"] + [x[0] for x in ops if "cvt" in x[0]]
                else:
                    self.smlast = [x[0] for x in ops]
                continue
            for e in range(8):
                k = self.idx[(i, 2 * e)]
                self.place(f"v_exp_f32 v{S+e}, v{S+e}", "v", 2, k, k)
                if e & 1:
                    k = self.idx[(i, 2 * e + 1)]
                    self.place(f"v_cvt_pk_bf16_f32 v{P+e//2}, v{S+e-1}, v{S+e}", "v", 1, k, k)

    def kread(self, t, f):
        sl = t % 10
        kb, ks = f >> 2, f & 3
        return f"ds_read_b128 {r('a', aK+4*f, 4)}, v{vKA[sl//4]} offset:{(sl%4)*16384 + kb*8192 + ks*256}"

    def vread(self, t, f, h):
        sl = t % 10
        u, e = f >> 1, f & 1
        return f"ds_read_b64_tr_b16 {r('a', aV+4*f+2*h, 2)}, v{vVA[sl//4]} offset:{(sl%4)*16384 + h*8192 + u*256 + e*8}"

    def place_reads(self):
        self.need = {}
        for t in range(1, 32):
            s = first(t) - 2
            for f in range(8):
                lo = self.idx[(s, f)]
                use = self.idx[(s + 1, f)]
                txt = self.kread(t, f)
                self.place(txt, "m", 1, lo, use - 5, "kread")
                self.need.setdefault(use, []).append(txt)
        for t in range(0, 32):
            s = first(t)
            for f in range(8):
                use = self.idx[(s + 1, 8 + f)]
                lo = self.idx[(s, 8 + f)] if t > 0 else self.idx[(1, 0)]
                for h in range(2):
                    txt = self.vread(t, f, h)
                    if t == 0:
                        self.v0reads.append(txt)
                    else:
                        self.place(txt, "m", 1, lo, use - 5, "vread")
                        self.need.setdefault(use, []).append(txt)

    def dma(self, t, which):
        u = unit_of(t)
        fl = self.o["ldflag"] if t < 16 else self.o["reflag"]
        if t < 6 and self.o.get("keepflag") is not None:
            fl = self.o["keepflag"]
        out = []
        if "k" in which:
            out += [f"buffer_load_dwordx4 v{vDK}, s[{sK}:{sK+3}], s{sUNIT+u} offen offset:{o} {fl} lds ; K{t}" for o in (0, 1024)]
        if "v" in which:
            out += [f"buffer_load_dwordx4 v{vDV}, s[{sV}:{sV+3}], s{sUNIT+u} offen offset:{o} {fl} lds ; V{t}" for o in (2048, 3072)]
        return out

    def m0(self, t):
        return f"s_add_u32 m0, s{sW4K}, {(t % 10) * 16384}"

    def qload(self, job, j):
        return [f"buffer_load_dwordx4 {Qreg(job, j, ks)}, v{vQO}, s[{sQ}:{sQ+3}], s{sROW + job*NT1 + j} offen offset:{ks*64} {self.o['qflag']} ; Q{job}_{j}"
                for ks in range(4)]

    def scale_v(self, j):
        out = []
        for k in range(16):
            q = vQ1 + 16 * j + k
            a, b = vT + 2 * (k & 1), vT + 2 * (k & 1) + 1
            out += [f"v_lshlrev_b32 v{a}, 16, v{q}", f"v_and_b32 v{b}, s{sMASK}, v{q}",
                    f"v_mul_f32 v{a}, s{sC}, v{a}", f"v_mul_f32 v{b}, s{sC}, v{b}",
                    f"v_cvt_pk_bf16_f32 v{q}, v{a}, v{b}"]
        return out

    def scale_a(self, j):
        out = []
        for k in range(16):
            q = aQ2 + 16 * j + k
            a, b = vT, vT + 1
            out += [f"v_accvgpr_read_b32 v{b}, a{q}", f"v_lshlrev_b32 v{a}, 16, v{b}", f"v_and_b32 v{b}, s{sMASK}, v{b}",
                    f"v_mul_f32 v{a}, s{sC}, v{a}", f"v_mul_f32 v{b}, s{sC}, v{b}",
                    f"v_cvt_pk_bf16_f32 v{a}, v{a}, v{b}", f"v_accvgpr_write_b32 a{q}, v{a}"]
        return [(x, "v", 1, 0) for x in out]

    def lsum_ops(self, j):
        R = vR + j
        t = vT + 2
        return [(f"v_accvgpr_read_b32 v{R}, a{aL+4*j}", "v", 1, 0),
                (f"v_subrev_u32 v{t}, s{sLO}, v{R}", "v", 1, 0),
                (f"v_cmp_lt_u32 vcc, s{sRNG}, v{t}", "v", 1, 0),
                (f"v_rcp_f32 v{R}, v{R}", "v", 2, 0),
                (f"s_or_b64 s[{sFLAG}:{sFLAG+1}], s[{sFLAG}:{sFLAG+1}], vcc", "s", 0, 1)]

    def drain_ops(self, job, j):
        cls, ob = Obase(job, j)
        R = vR + j
        ops = []
        for u in range(4):
            if cls == "v":
                b = ob + 8 * u
            else:
                b = vT + 8 + 8 * (u & 1)
                for k in range(8):
                    ops.append((f"v_accvgpr_read_b32 v{b+k}, a{ob+8*u+k}", "v", 1, 0))
            for k in range(8):
                ops.append((f"v_mul_f32 v{b+k}, v{R}, v{b+k}", "v", 1, 0))
            for k in range(4):
                ops.append((f"v_cvt_pk_bf16_f32 v{b+k}, v{b+2*k}, v{b+2*k+1}", "v", 1, 0))
            ops.append((f"buffer_store_dwordx4 {r('v', b, 4)}, v{vQO}, s[{sO}:{sO+3}], s{sROW + job*NT1 + j} offen offset:{u*64} {self.o['stflag'] if job == 0 else self.o.get('stflag2', self.o['stflag'])} ; O{job}_{j}", "m", 2, 1))
        return ops

    def barrier_gap(self, t):
        return self.at(first(t) - 3, 16)

    def schedule(self):
        o = self.o
        self.v0reads = []
        self.build_gaps()
        G = self.gaps
        self.bars = {}
        bar_ts = list(range(1, 16)) + list(o["bar2"])
        for t in bar_ts:
            k = self.barrier_gap(t)
            self.bars[t] = k
            if t == 1 and o["b1late"]:
                continue
            tag = f"V{t}" if t < 16 else None
            if t == 1:
                tag = o["b1"]
            if t >= 26:
                tag = "V%d" % (min([b for b in bar_ts if b > t] + [32]) - 1)
            G[k].s.append(f"@VMWAIT {tag}" if tag else "s_nop 0")
            G[k].s.append("s_barrier")
            G[k].locked = True
        if o["b1"] == "K1":
            k = self.idx[(first(1) - 1, 16)]
            G[k].s += ["@VMWAIT V1", "s_barrier"]
            G[k].locked = True
        self.place_softmax()
        self.place_reads()
        def grp(names):
            out = []
            for nm in names:
                if nm[0] == "Q":
                    out += self.qload(0, int(nm[1:]))
                else:
                    out += [self.m0(int(nm[1:])), "s_nop 0"] + self.dma(int(nm[1:]), {"K": "k", "V": "v", "U": "kv"}[nm[0]])
            return out
        st = [x.split() for x in o["start"].split("|")]
        self.init_groups = grp(st[0])
        G[self.idx[(-1, 0)]].pre += (["@VMWAIT Q0_0"] + grp(st[1]) + self.scale_v(0) + ["@VMWAIT K0", "s_barrier"] +
                                     [self.kread(0, f) for f in range(8)] + ["s_waitcnt lgkmcnt(0)"])
        G[self.idx[(0, 0)]].pre += ["@VMWAIT Q0_1"] + grp(st[2]) + self.scale_v(1) + ["s_nop 1"]
        G[self.idx[(1, 0)]].pre += (self.sm0 + ["@VMWAIT V0", "s_barrier"] + self.v0reads +
                                    ["@VMWAIT Q0_2"] + grp(st[3]) + self.scale_v(2) + ["s_waitcnt lgkmcnt(0)"])
        for j in range(3, NT1):
            G[self.idx[(j - 1, 0)]].pre += [f"@VMWAIT Q0_{j}"] + grp(st[j + 1]) + self.scale_v(j) + ["s_nop 1"]
        if o["b1late"]:
            G[self.idx[(NT1 - 2, 0)]].pre += ["@VMWAIT K1", "s_barrier"]
        self.insert_lgkm_waits()
        k = 0
        order = []
        for ent in o["sched"].split():
            p = ent.split(":")
            sl, gname = float(p[0]), p[1]
            sp = int(p[2]) if len(p) > 2 else o["space"]
            lo = max(k + 1, self.at(int(sl), int(round((sl - int(sl)) * 17))))
            t = int(gname[1:])
            if gname[0] == "q":
                ops = [(x, "m", 2, sp) for x in self.qload(1, t)]
                ops[0] = ops[0][:3] + (0,)
            else:
                if t >= 10:
                    bt = min(b for b in self.bars if b >= t - 9)
                    lo = max(lo, self.bars[bt] + 1)
                ops = [(self.m0(t), "s", 0, 0)] + [(x, "m", 2, sp) for x in self.dma(t, "kv")]
                ops[1] = ops[1][:3] + (1,)
            k = self.stream(ops, lo, what=gname)
            order.append((gname, k))
        self.order = order
        q2bar = {}
        for n, (gname, kk) in enumerate(order):
            if gname[0] == "q":
                q2bar[int(gname[1:])] = self.place(f"@VMWAIT Q1_{gname[1:]}", "s", 0, kk + int(o["qdelay"] * 17))
        for gname, kk in order:
            if gname[0] == "U":
                t = int(gname[1:])
                bt = max(b for b in self.bars if b <= t)
                assert kk < self.bars[bt], (gname, "issued after its barrier")
        for (wt, wsel) in o.get("wbl2", ()):
            G[self.idx[(first(wt), 0)]].pre += [f"s_lshr_b32 s3, s2, 3", f"s_lshl_b32 s3, s3, 16", f"s_or_b32 s3, s3, s{sW4K}", f"s_cmp_eq_u32 s3, {wsel << 16}",
                                                f"s_cbranch_scc0 L_nowb{wt}", "buffer_wbl2 sc1", f"L_nowb{wt}:"]
        k = 0
        for n in range(NT2):
            lo = max(k, q2bar[n] + 1)
            hi = self.idx[(J2 + n - 1, 0)] - 2
            k = self.stream(self.scale_a(n), lo, hi, f"scale{n}")
        self.scale_end = k
        lend = {}
        k = 0
        for j in range(NT1):
            fin = self.idx[(first(15) + j + 1, 16)]
            hi = self.idx[(first(16) + j + 1, 16)] - 2 if j < NT2 else None
            k = self.stream(self.lsum_ops(j)[:1], max(k, fin + 5), hi, "lsum")
            lend[j] = k
        k = 0
        for j in range(NT1):
            hi = self.idx[(J2 + 3 + 1, 8)] - 2 if j == 0 else None
            k = self.stream(self.lsum_ops(j)[1:], max(k, lend[j]), hi, f"lrest{j}")
            k = self.stream(self.drain_ops(0, j), k, hi, f"drain{j}")
        self.drain1_end = k
        kk = self.at(NITEM - 1, 0)
        ops = []
        S = vS + 8 * ((NITEM - 1) & 1)
        for x in self.smlast:
            ops.append((x, "v", 2 if "exp" in x else 1, 0 if "exp" in x else 1))
        placed = 0
        lastg = self.idx[(NITEM, 8)]
        rest = []
        kcur = kk
        for op in ops:
            ok = False
            if not rest:
                kt = kcur + op[3]
                while kt < lastg and G[kt].free_v() < op[2]:
                    kt += 1
                if kt < lastg:
                    self.place(op[0], "v", op[2], kt, kt)
                    kcur = kt
                    ok = True
            if not ok:
                rest.append(op[0])
        G[lastg].pre += [x for x in rest if "exp" in x] + ["s_nop 0"] + [x for x in rest if "cvt" in x] + ["s_nop 1"]
        k = max(k, 0)
        for j in range(NT2):
            fin = self.idx[(first(31) + j + 1, 16)]
            if j == NT2 - 1:
                self.gaps[-1].v.append("s_nop 7")
                lo = len(G) - 1
            else:
                lo = fin + 5
            k = self.stream(self.lsum_ops(j), max(k, min(lo, len(G) - 1)), None, "lsum2")
            if k == len(G) - 1:
                self.gaps[-1].v.append("s_nop 0")
            k = self.stream(self.drain_ops(1, j), min(k + 1, len(G) - 1), None, "drain2")

    def insert_lgkm_waits(self):
        G = self.gaps
        issued = []
        done = 0
        for k, gp in enumerate(G):
            for x in gp.pre:
                if x.startswith("ds_"):
                    issued.append(x)
                if x.startswith("s_waitcnt lgkmcnt(0)"):
                    done = len(issued)
            nd = self.need.get(k + 1, [])
            if nd:
                pos = max(len(issued) - 1 - issued[::-1].index(x) for x in nd)
                if pos >= done:
                    n = len(issued) - 1 - pos
                    assert n <= 15
                    w = f"s_waitcnt lgkmcnt({n})"
                    if gp.locked:
                        gp.s.insert(0, w)
                    else:
                        if gp.free_s() < 1:
                            print(f"; note: gap {gp.slot},{gp.g} overfull by lgkm wait", file=sys.stderr)
                        gp.s.insert(0, w)
                    done = pos + 1
            for x in gp.m:
                if x.startswith("ds_"):
                    issued.append(x)

    def prologue(self):
        o = self.o
        L = []
        a = L.append
        if o["stamps"]:
            a("s_memrealtime s[90:91]"); a("s_memtime s[92:93]")
        a("s_cmp_ge_u32 s2, 256")
        a("s_cbranch_scc1 L_exit")
        a("s_load_dwordx8 s[4:11], s[0:1], 0")
        if o["stamps"]:
            a("s_load_dwordx4 s[12:15], s[0:1], 32")
        a(f"v_lshrrev_b32 v10, 6, v0              ; wave")
        a(f"v_and_b32 v11, 63, v0                 ; lane")
        a(f"v_readfirstlane_b32 s{sTMP}, v10")
        a(f"v_and_b32 v12, 15, v0                 ; i")
        a(f"v_lshrrev_b32 v13, 4, v11             ; g")
        a(f"v_and_b32 v14, 3, v0                  ; lane&3")
        a(f"v_bfe_u32 v15, v0, 2, 2               ; (lane>>2)&3")
        a(f"s_lshl_b32 s{sW4K}, s{sTMP}, 12")
        a(f"v_lshlrev_b32 v{vQO}, 8, v12")
        a(f"v_lshl_add_u32 v{vQO}, v13, 4, v{vQO}")
        a(f"v_lshl_add_u32 v{vQO}, v10, 12, v{vQO}")
        a(f"v_lshlrev_b32 v16, 1, v10")
        a(f"v_and_b32 v16, 2, v16")
        a(f"v_xor_b32 v16, v16, v15")
        a(f"v_lshlrev_b32 v17, 11, v10")
        a(f"v_lshl_add_u32 v17, v13, 6, v17       ; w*2048 + g*64")
        a(f"v_lshl_add_u32 v{vDK}, v14, 8, v17")
        a(f"v_lshl_add_u32 v{vDK}, v16, 4, v{vDK}")
        a(f"v_lshl_add_u32 v{vDV}, v15, 8, v17")
        a(f"v_lshl_add_u32 v{vDV}, v14, 4, v{vDV}")
        a(f"s_mul_i32 s{sTMP}, s2, 155648")
        a(f"s_lshl_b32 s3, s2, 17")
        a(f"s_mov_b32 s{sK+2}, 131072")
        a(f"s_mov_b32 s{sK+3}, 0x20000")
        a(f"s_mov_b32 s{sQ+2}, 155648")
        a(f"s_mov_b32 s{sQ+3}, 0x20000")
        a(f"s_mov_b32 s{sV+2}, {131072+2048}")
        a(f"s_mov_b32 s{sV+3}, 0x20000")
        a(f"s_mov_b32 s{sO+2}, 155648")
        a(f"s_mov_b32 s{sO+3}, 0x20000")
        for u in range(16):
            a(f"s_mov_b32 s{sUNIT+u}, {u*8192}")
        for j in range(NT1 + NT2):
            a(f"s_mov_b32 s{sROW+j}, {j*16384}")
        if o["prefetch"]:
            a("s_getpc_b64 s[72:73]")
            a("L_pc:")
            if o["touch"]:
                a("s_add_u32 s72, s72, L_main-L_pc")
                a("s_addc_u32 s73, s73, 0")
            a("s_lshr_b32 s74, s2, 3")
            a("s_and_b32 s74, s74, 31")
            a("s_lshl_b32 s74, s74, 11")
            a("v_lshlrev_b32 v18, 9, v10")
            a("v_lshl_add_u32 v18, v14, 7, v18")
            a("v_add_u32 v18, s74, v18")
            a("v_min_u32 v18, L_codeend-%s-4, v18" % ("L_main" if o["touch"] else "L_pc"))
            a(f"global_load_dword v{vT+23}, v18, s[72:73] ; PF")
        a("s_waitcnt lgkmcnt(0)")
        a(f"s_add_u32 s{sK}, s6, s3")
        a(f"s_addc_u32 s{sK+1}, s7, 0")
        a(f"s_add_u32 s{sQ}, s4, s{sTMP}")
        a(f"s_addc_u32 s{sQ+1}, s5, 0")
        a(f"s_add_u32 s{sV}, s8, s3")
        a(f"s_addc_u32 s{sV+1}, s9, 0")
        a(f"s_sub_u32 s{sV}, s{sV}, 2048")
        a(f"s_subb_u32 s{sV+1}, s{sV+1}, 0")
        L += self.init_groups
        a(f"s_add_u32 s{sO}, s10, s{sTMP}")
        a(f"s_addc_u32 s{sO+1}, s11, 0")
        a(f"v_lshrrev_b32 v16, 1, v15")
        a(f"v_and_b32 v17, 1, v15")
        a(f"v_lshlrev_b32 v18, 12, v16")
        a(f"v_lshl_add_u32 v18, v17, 10, v18")
        a(f"v_and_b32 v16, 2, v15")
        a(f"v_xor_b32 v16, v16, v13")
        a(f"v_lshl_add_u32 v18, v16, 6, v18")
        a(f"v_lshl_add_u32 v{vKA[0]}, v14, 4, v18")
        a(f"v_add_u32 v{vKA[1]}, 0x10000, v{vKA[0]}")
        a(f"v_add_u32 v{vKA[2]}, 0x20000, v{vKA[0]}")
        a(f"v_lshrrev_b32 v16, 1, v13")
        a(f"v_and_b32 v17, 1, v13")
        a(f"v_lshlrev_b32 v18, 12, v16")
        a(f"v_lshl_add_u32 v18, v17, 10, v18")
        a(f"v_lshl_add_u32 v18, v12, 4, v18      ; (i>>2)*64+(i&3)*16 = i*16")
        a(f"v_add_u32 v{vVA[0]}, 2048, v18")
        a(f"v_add_u32 v{vVA[1]}, 0x10000, v{vVA[0]}")
        a(f"v_add_u32 v{vVA[2]}, 0x20000, v{vVA[0]}")
        a(f"v_mov_b32 v16, 0x3f803f80")
        for k in range(4):
            a(f"v_accvgpr_write_b32 a{aONE+k}, v16")
        a(f"s_mov_b32 s{sC}, {C_SCALE:#x}")
        a(f"s_mov_b32 s{sMASK}, 0xffff0000")
        a(f"s_mov_b32 s{sLO}, {L_LO:#x}")
        a(f"s_mov_b32 s{sRNG}, {L_HI-L_LO:#x}")
        a(f"s_mov_b64 s[{sFLAG}:{sFLAG+1}], 0")
        return L

    def linear(self):
        L = self.prologue() + (["@VMWAIT PF"] if self.o["prefetch"] else []) + ["@MAIN"]
        st = self.o["stamps"]
        tl = {self.idx[(first(t), 0)]: t for t in range(32)} if self.o.get("timeline") else {}
        tl_end = self.idx[(NITEM - 1, 8)]
        for k, gp in enumerate(self.gaps):
            if k in tl:
                if tl[k] > 0:
                    L += ["s_waitcnt lgkmcnt(0)", f"v_writelane_b32 v47, s74, {tl[k]-1}", f"v_writelane_b32 v47, s72, {tl[k]-1+32}"]
                L += ["s_memtime s[74:75]", "s_memrealtime s[72:73]"] if tl[k] > 0 else []
                if tl[k] == 0:
                    gp.pre = gp.pre + ["s_memtime s[74:75]", "s_memrealtime s[72:73]"]
            if tl and k == tl_end:
                L += ["s_waitcnt lgkmcnt(0)", f"v_writelane_b32 v47, s74, 31", f"v_writelane_b32 v47, s72, 63"]
            if st and k == self.idx[(4, 0)]:
                L += gp.pre + ["s_memrealtime s[84:85]", "s_memtime s[86:87]"]
            elif st and k == self.idx[(J2, 0)]:
                L += gp.pre + ["s_memrealtime s[82:83]"]
            elif st and gp.mfma is None:
                L += gp.pre + ["s_memrealtime s[88:89]", "s_memtime s[80:81]"]
            else:
                L += gp.pre
            if gp.mfma:
                if gp.g == 0 or (gp.slot >= NITEM - 1 and gp.g == 8):
                    L.append(f"; ---- slot {gp.slot}")
                L.append(gp.mfma)
            L += gp.s + gp.m + gp.v
        out = []
        vm = []
        done = 0
        self.maxout = 0
        for x in L:
            if x.startswith("@VMWAIT"):
                tag = x.split()[1]
                pos = max(n for n, y in enumerate(vm) if y == tag)
                n = len(vm) - 1 - pos
                assert n <= 63, (tag, n)
                if pos >= done:
                    done = pos + 1
                out.append(f"s_waitcnt vmcnt({n})")
                continue
            if x.startswith(("buffer_", "global_")) and not x.startswith("buffer_wbl2"):
                vm.append(x.split(";")[-1].strip())
                self.maxout = max(self.maxout, len(vm) - done)
            out.append(x)
        return out

    def slow_path(self):
        L = []
        a = L.append
        M = "v_mfma_f32_16x16x32_bf16"
        a("L_slow:")
        a("s_waitcnt vmcnt(0)")
        a("v_and_b32 v12, 15, v0")
        a("v_bfe_u32 v13, v0, 4, 2")
        a("v_lshlrev_b32 v2, 8, v12")
        a("v_lshl_add_u32 v2, v13, 4, v2           ; K offset")
        a("v_lshlrev_b32 v3, 1, v12")
        a("v_lshl_add_u32 v3, v13, 10, v3")
        a("v_add_u32 v3, 2048, v3")
        a("v_lshlrev_b32 v4, 8, v12")
        a("v_lshl_add_u32 v4, v13, 3, v4")
        a(f"v_add_u32 v4, s{sW4K}, v4")
        a("s_mov_b32 s76, 0")
        a("L_slow_sub:")
        for ks in range(4):
            a(f"buffer_load_dwordx4 v[{64+4*ks}:{67+4*ks}], v{vQO}, s[{sQ}:{sQ+3}], s76 offen offset:{ks*64}")
        a("v_mov_b32 v5, 0xff800000")
        a("s_mov_b32 s77, 0")
        a("L_slow_max:")
        for pas in range(2):
            if pas == 1:
                a("v_mov_b32 v6, v5")
                a("s_nop 1")
                a("v_permlane32_swap_b32 v5, v6")
                a("s_nop 1")
                a("v_max_f32 v5, v5, v6")
                a("v_mov_b32 v6, v5")
                a("s_nop 1")
                a("v_permlane16_swap_b32 v5, v6")
                a("s_nop 1")
                a("v_max_f32 v5, v5, v6")
                a(f"v_mul_f32 v5, s{sC}, v5")
                a("v_mov_b32 v7, 0")
                for k in range(32):
                    a(f"v_mov_b32 v{96+k}, 0")
                a("s_mov_b32 s77, 0")
                a("L_slow_pv:")
            a("s_add_u32 s78, s77, 4096")
            for f in range(8):
                a(f"buffer_load_dwordx4 v[{128+4*f}:{131+4*f}], v2, s[{sK}:{sK+3}], s{77 + (f >> 2)} offen offset:{(f & 3)*64}")
            if pas == 1:
                for f in range(8):
                    for jj in range(8):
                        a(f"buffer_load_ushort v{160+8*f+jj}, v3, s[{sV}:{sV+3}], s{77 + (jj >> 2)} offen offset:{(jj & 3)*256 + f*32}")
                    if f == 3:
                        a("s_waitcnt vmcnt(16)")
            a("s_waitcnt vmcnt(0)")
            for f in range(8):
                kb, ks = f >> 2, f & 3
                d = f"v[{16+4*kb}:{19+4*kb}]"
                a(f"{M} {d}, v[{128+4*f}:{131+4*f}], v[{64+4*ks}:{67+4*ks}], {'0' if ks == 0 else d}")
            a("s_nop 7")
            a("s_nop 1")
            if pas == 0:
                for k in range(0, 8, 2):
                    a(f"v_max3_f32 v5, v5, v{16+k}, v{17+k}")
                a("s_add_u32 s77, s77, 8192")
                a("s_cmp_lt_u32 s77, 131072")
                a("s_cbranch_scc1 L_slow_max")
            else:
                for k in range(8):
                    a(f"v_fma_f32 v{16+k}, v{16+k}, s{sC}, -v5")
                for k in range(8):
                    a(f"v_exp_f32 v{16+k}, v{16+k}")
                a("s_nop 0")
                for k in range(8):
                    a(f"v_add_f32 v7, v7, v{16+k}")
                for k in range(4):
                    a(f"v_cvt_pk_bf16_f32 v{32+k}, v{16+2*k}, v{17+2*k}")
                for k in range(32):
                    a(f"v_lshl_or_b32 v{224+k}, v{161+2*k}, 16, v{160+2*k}")
                a("s_nop 1")
                for f in range(8):
                    d = f"v[{96+4*f}:{99+4*f}]"
                    a(f"{M} {d}, v[{224+4*f}:{227+4*f}], v[32:35], {d}")
                a("s_add_u32 s77, s77, 8192")
                a("s_cmp_lt_u32 s77, 131072")
                a("s_cbranch_scc1 L_slow_pv")
        a("v_mov_b32 v6, v7")
        a("s_nop 1")
        a("v_permlane32_swap_b32 v7, v6")
        a("s_nop 1")
        a("v_add_f32 v7, v7, v6")
        a("v_mov_b32 v6, v7")
        a("s_nop 1")
        a("v_permlane16_swap_b32 v7, v6")
        a("s_nop 1")
        a("v_add_f32 v7, v7, v6")
        a("v_rcp_f32 v7, v7")
        a("s_nop 7")
        for k in range(32):
            a(f"v_mul_f32 v{96+k}, v7, v{96+k}")
        for k in range(16):
            a(f"v_cvt_pk_bf16_f32 v{128+k}, v{96+2*k}, v{97+2*k}")
        for f in range(8):
            a(f"buffer_store_dwordx2 v[{128+2*f}:{129+2*f}], v4, s[{sO}:{sO+3}], s76 offen offset:{f*32}")
        a("s_waitcnt vmcnt(0)")
        a("s_add_u32 s76, s76, 16384")
        a(f"s_cmp_lt_u32 s76, {16384*(NT1+NT2)}")
        a("s_cbranch_scc1 L_slow_sub")
        return L

    def stamp_out(self):
        if self.o["stamps"] == "dbg":
            L = ["s_waitcnt vmcnt(0) lgkmcnt(0)", "s_memrealtime s[94:95]", "s_memtime s[96:97]", "s_waitcnt lgkmcnt(0)",
                 "s_mov_b32 s76, s12", "s_mov_b32 s77, s13", "s_mov_b32 s78, 256", "s_mov_b32 s79, 0x20000",
                 "v_and_b32 v2, 63, v0", "v_lshlrev_b32 v1, 2, v2", "v_mov_b32 v4, 0"]
            for n, sr in enumerate([90, 84, 82, 88, 94]):
                L += [f"s_not_b32 s3, s{sr}", f"v_writelane_b32 v4, s3, {2*n}", f"v_writelane_b32 v4, s{sr}, {2*n+1}"]
            L += ["s_sub_u32 s3, s80, s86", "v_writelane_b32 v4, s3, 10", "s_not_b32 s3, s3", "v_writelane_b32 v4, s3, 12", "s_sub_u32 s3, s96, s92", "v_writelane_b32 v4, s3, 11"]
            L += ["v_cmp_gt_u32 vcc, 16, v2", "s_and_saveexec_b64 s[98:99], vcc", "buffer_atomic_umax v4, v1, s[76:79], 0 offen"]
            return L
        L = ["s_waitcnt vmcnt(0) lgkmcnt(0)", "s_memrealtime s[94:95]", "s_memtime s[96:97]", "s_waitcnt lgkmcnt(0)",
             "s_mov_b32 s76, s14", "s_mov_b32 s77, s15", "s_mov_b32 s78, 0x1000000", "s_mov_b32 s79, 0x20000",
             "v_lshrrev_b32 v1, 6, v0", "v_lshlrev_b32 v1, 6, v1", "s_lshl_b32 s3, s2, 8", "v_add_u32 v1, s3, v1"]
        for n, s in enumerate([90, 91, 92, 93, 94, 95, 96, 97, 84, 85, 86, 82, 88, 89, 80, 81]):
            L.append(f"v_mov_b32 v{4+n}, s{s}")
        if self.o.get("timeline"):
            L += ["v_lshlrev_b32 v2, 2, v0", "s_lshl_b32 s3, s2, 10", "s_add_u32 s3, s3, 0x100000", "buffer_store_dword v47, v2, s[76:79], s3 offen"]
        L += ["v_and_b32 v2, 63, v0", "v_cmp_eq_u32 vcc, 0, v2", "s_and_saveexec_b64 s[98:99], vcc"]
        for n in range(4):
            L.append(f"buffer_store_dwordx4 v[{4+4*n}:{7+4*n}], v1, s[76:79], 0 offen offset:{16*n}")
        return L

    def text(self):
        self.schedule()
        body = self.linear()
        verify([x for x in body if x != "@MAIN"])
        tail = [f"s_cmp_lg_u64 s[{sFLAG}:{sFLAG+1}], 0", "s_cbranch_scc1 L_slow"] if self.o["slow"] else []
        if self.o.get("forceslow"):
            tail = ["s_branch L_slow"]
        tail += ["L_done:"]
        if self.o["stamps"]:
            tail += self.stamp_out()
        tail += ["L_exit:", "s_endpgm", "L_codeend:"]
        cut = body.index("@MAIN")
        if self.o["touch"]:
            main, chain = add_markers(body[cut + 1:] + tail)
            body = body[:cut] + chain + ["s_branch L_main", ".p2align 12", "L_main:"] + main
            tail = []
        else:
            body = body[:cut] + body[cut + 1:]
        if self.o["slow"]:
            sp = self.slow_path()
            verify(sp)
            tail += sp + ["s_branch L_done"]
        hdr = open("header.txt").read()
        fmt = lambda x: (x if x.endswith(":") or x.startswith((";", ".")) else "    " + x)
        return (hdr + f""".amdgcn_target "amdgcn-amd-amdhsa--gfx950"
.text
.globl {KN}
.p2align 8
.type {KN},@function
{KN}:
""" + "\n".join(fmt(x) for x in body + tail) + f"""
.section .rodata,"a"
.p2align 6
.amdhsa_kernel {KN}
  .amdhsa_next_free_vgpr 512
  .amdhsa_next_free_sgpr 102
  .amdhsa_accum_offset 256
  .amdhsa_group_segment_fixed_size 0
  .amdhsa_kernarg_size 48
  .amdhsa_user_sgpr_count 2
  .amdhsa_user_sgpr_kernarg_segment_ptr 1
  .amdhsa_system_sgpr_workgroup_id_x 1
.end_amdhsa_kernel
""")


def isize(x):
    x = x.split(";")[0].strip()
    if not x or x.endswith(":") or x.startswith("."):
        return 0
    op, _, rest = x.partition(" ")
    if op.startswith(("v_mfma", "ds_", "buffer_", "global_", "v_accvgpr", "v_cvt_pk", "v_fma", "v_lshl_add", "v_lshl_or", "v_bfe", "v_max3",
                      "v_writelane", "v_pk_", "s_load", "s_mem", "v_add3", "v_mul_lo", "v_perm_")):
        return 8
    if "_dpp" in op or "row_" in rest or "quad_perm" in rest:
        return 8
    if op.startswith(("s_waitcnt", "s_nop", "s_barrier", "s_cbranch", "s_branch", "s_endpgm", "s_setprio", "s_sleep")):
        return 4
    for t in rest.split(","):
        t = t.strip().split()[0] if t.strip() else ""
        if re.fullmatch(r"-?(0x[0-9a-fA-F]+|\d+)", t):
            v = int(t, 0)
            if not -16 <= v <= 64:
                return 8
        elif t.startswith("L_"):
            return 8
    return 4


def add_markers(L, nw=4):
    out, addr, page, marks = [], 0, 1, []
    n = 0
    while n < len(L):
        x = L[n]
        if addr >= page * 4096:
            best, a2 = None, addr
            for m in range(n, len(L)):
                if a2 + 4 > page * 4096 + 64:
                    break
                prev = L[m - 1] if m > n else (out[-1] if out else "")
                if prev.startswith("v_mfma") and not L[m].startswith(("s_", "@")) and isize(L[m]):
                    best = m
                    break
                a2 += isize(L[m])
            if best is None:
                best = n
            for m in range(n, best):
                out.append(L[m]); addr += isize(L[m])
            marks.append(len(out))
            out.append(None); addr += 4
            n = best
            page += 1
            continue
        out.append(x); addr += isize(x); n += 1
    per = (len(marks) + nw - 1) // nw
    res = []
    mi = {p: k for k, p in enumerate(marks)}
    for k, x in enumerate(out):
        if x is None:
            m = mi[k]
            last = (m + 1) % per == 0 or m + 1 == len(marks)
            res += [f"L_m{m}:", f"s_cbranch_execz {'L_back' if last else 'L_m%d' % (m + 1)}"]
        else:
            res.append(x)
    chain = ["s_mov_b64 exec, 0"]
    for w in range(nw):
        if w * per < len(marks):
            chain += [f"s_cmp_eq_u32 s{sW4K}, {w * 4096}", f"s_cbranch_scc1 L_m{w * per}"]
    chain += ["L_back:", "s_mov_b64 exec, -1"]
    return res, chain


def regs(tok):
    tok = tok.strip().lstrip("-")
    m = re.fullmatch(r"([va])(\d+)", tok)
    if m:
        return {(m.group(1), int(m.group(2)))}
    m = re.fullmatch(r"([va])\[(\d+):(\d+)\]", tok)
    if m:
        return {(m.group(1), k) for k in range(int(m.group(2)), int(m.group(3)) + 1)}
    return set()


def parse(x):
    x = x.split(";")[0].strip()
    if not x or x.endswith(":"):
        return None
    op, _, rest = x.partition(" ")
    ops = [t.strip() for t in rest.split(",")]
    last = ops[-1].split()
    if last:
        ops[-1] = last[0]
    d = dict(op=op, w=set(), rd=set(), kind="s", c=set(), ws=1, m0w=False)
    if op == "s_nop":
        d["ws"] = int(ops[0]) + 1
    if op.startswith("s_") and ops and ops[0] == "m0":
        d["m0w"] = True
    if op.startswith("v_mfma"):
        d.update(kind="mfma", w=regs(ops[0]), rd=regs(ops[1]) | regs(ops[2]), c=regs(ops[3]))
    elif op.startswith("v_"):
        d["kind"] = "valu"
        if op.startswith("v_cmp") or op.startswith("v_readfirstlane"):
            d["rd"] = set().union(*[regs(t) for t in ops[1:]])
        elif op.startswith("v_permlane"):
            d["w"] = regs(ops[0]) | regs(ops[1]); d["rd"] = set(d["w"])
        else:
            d["w"] = regs(ops[0]); d["rd"] = set().union(*[regs(t) for t in ops[1:]])
        d["trans"] = op.startswith(("v_exp", "v_rcp"))
    elif op.startswith("ds_read"):
        d.update(kind="ds", w=regs(ops[0]), rd=regs(ops[1]))
    elif op.startswith("buffer_store"):
        d.update(kind="store", rd=regs(ops[0]) | regs(ops[1]), data=regs(ops[0]))
    elif op.startswith(("buffer_load", "global_load")):
        if " lds" in x:
            d.update(kind="dma", rd=regs(ops[0]))
        else:
            d.update(kind="load", w=regs(ops[0]), rd=regs(ops[1]))
    return d


def verify(L):
    ins = [(x, parse(x)) for x in L]
    ins = [(x, d) for x, d in ins if d]
    bad = 0
    for n, (x, d) in enumerate(ins):
        dist = 0
        for m in range(n - 1, max(-1, n - 14), -1):
            y, p = ins[m]
            need = 0
            if p["kind"] == "mfma":
                if d["kind"] == "mfma":
                    if p["w"] & d["rd"]:
                        need = 8
                    elif p["w"] & d["c"] and p["w"] != d["c"]:
                        need = 6
                    elif p["w"] & d["w"] and p["w"] != d["w"]:
                        need = 6
                elif p["w"] & (d["rd"] | d["w"]):
                    need = 8
                elif d["kind"] == "valu" and p["c"] & d["w"]:
                    need = 3
            elif p["kind"] == "valu":
                if d["kind"] == "mfma" and p["w"] & (d["rd"] | d["c"]):
                    need = 2
                elif d["kind"] == "valu" and p.get("trans") and not d.get("trans") and p["w"] & d["rd"]:
                    need = 1
                elif d["op"].startswith("v_permlane") and p["w"] & d["rd"]:
                    need = 2
                elif d["op"].startswith("v_readfirstlane") and p["w"] & d["rd"]:
                    need = 1
            elif p["kind"] == "store":
                if p["data"] & d["w"]:
                    need = 2
            elif p["m0w"] and d["kind"] == "dma":
                need = 1
            if dist < need:
                print(f"HAZARD need {need} have {dist}:\n   {y}\n   {x}", file=sys.stderr)
                bad += 1
            dist += p["ws"]
    assert bad == 0


if __name__ == "__main__":
    opt = {}
    out = sys.argv[1]
    for kv in sys.argv[2:]:
        k, v = kv.split("=", 1)
        try:
            v = eval(v)
        except Exception:
            pass
        opt[k] = v
    g = Gen(opt)
    t = g.text()
    open(out, "w").write(t)
    G = g.gaps
    print("   issue ends:", " ".join(f"{n}@{G[k].slot}" for n, k in g.order), file=sys.stderr)
    print(f"{out}: max vm outstanding {g.maxout}, scale ends slot {G[g.scale_end].slot}, drain1 ends at slot {G[g.drain1_end].slot}, tail instrs {len(G[-1].v)}, "
          f"free units job1 {sum(x.free_v() for x in G if x.slot < J2)}, job2 {sum(x.free_v() for x in G[:-1] if x.slot >= J2)}", file=sys.stderr)
```

```python
import sys, re, struct, math

KN = "standalone__mha_softmax__near_ridge_kernel"

vTID = 0
vQO = 1
vDK, vDV = 2, 3
vKA = [4, 5, 6]
vVA = [7, 8, 9]
vR = 10
vS = 16
vP = 32
vT = 40
vO1 = 64
vQ1 = 160
aO1 = 0
aK = 96
aV = 128
aQ2 = 160
aL = 224
aONE = 248

sQ, sK, sV, sO = 16, 20, 24, 28
sW4K = 32
sTMP = 33
sC = 34
sMASK = 35
sLO, sRNG = 38, 39
sFLAG = 40
sROW = 44
sUNIT = 56

C_SCALE = struct.unpack("<I", struct.pack("<f", math.log2(math.e) / math.sqrt(128.0)))[0]
L_LO = (127 - 40) << 23
L_HI = (127 + 60) << 23

NT1, NT2 = 6, 4
NITEM = 16 * NT1 + 16 * NT2
J2 = 16 * NT1


def item(i):
    if i < J2:
        return 0, i // NT1, i % NT1
    return 1, 16 + (i - J2) // NT2, (i - J2) % NT2


def first(t):
    return t * NT1 if t <= 16 else J2 + (t - 16) * NT2


def unit_of(t):
    return t if t < 16 else (t - 10 if t < 26 else t - 26)


def r(cls, lo, n=1):
    return f"{cls}{lo}" if n == 1 else f"{cls}[{lo}:{lo+n-1}]"


def Qreg(job, j, ks):
    return r("v", vQ1 + 16 * j + 4 * ks, 4) if job == 0 else r("a", aQ2 + 16 * j + 4 * ks, 4)


def Obase(job, j):
    if job == 0:
        return ("v", vO1 + 32 * j) if j < 3 else ("a", aO1 + 32 * (j - 3))
    return ("v", vQ1 + 32 * j) if j < 3 else ("v", vO1)


class Gap:
    def __init__(self, mfma, slot, g):
        self.mfma = mfma
        self.slot, self.g = slot, g
        self.s, self.m, self.v = [], [], []
        self.units = 0
        self.pre = []
        self.locked = False

    def free_v(self):
        return 0 if self.locked else min(2 - self.units, 3 - self.units - len(self.s))

    def free_s(self):
        return 0 if self.locked else (3 - self.units - len(self.s) if self.s else 1)


class Gen:
    def __init__(self, opt):
        self.o = dict(ldflag="nt", qflag="nt", stflag="sc1", reflag="", keepflag="", stamps=False, prefetch=True,
                      slow=True, touch=True, b1late=True, space=17, qdelay=14, bar2=(18, 20, 22, 26, 28, 30),
                      sched="5:U4 9:U5 13:U6 17:q0 21:U7 25:U8 29:q1 33:U9 37:U10 41:q2 45:U11 49:U12 53:q3 57:U13 61:U14 65:U15 "
                            "102:U26:12 105:U27:12 110:U28:12 113:U29:12 118:U30:12 121:U31:12",
                      start="K0 Q0 Q1|V0 Q2|Q3|Q4|Q5 K1|V1 U2|U3", b1="K1")
        self.o.update(opt)
        self.gaps = []
        self.idx = {}

    def build_gaps(self):
        M = "v_mfma_f32_16x16x32_bf16"
        for s in range(-1, NITEM + 1):
            if s + 1 < NITEM:
                job, t, j = item(s + 1)
                S = vS + 8 * ((s + 1) & 1)
                for f in range(8):
                    kb, ks = f >> 2, f & 3
                    d = r("v", S + 4 * kb, 4)
                    c = "0" if ks == 0 else d
                    self.add(f"{M} {d}, {r('a', aK+4*f, 4)}, {Qreg(job, j, ks)}, {c}", s, f)
            if s - 1 >= 0:
                job, t, j = item(s - 1)
                P = r("v", vP + 4 * ((s - 1) & 1), 4)
                cls, ob = Obase(job, j)
                z = t in (0, 16)
                for f in range(8):
                    d = r(cls, ob + 4 * f, 4)
                    self.add(f"{M} {d}, {r('a', aV+4*f, 4)}, {P}, {'0' if z else d}", s, 8 + f)
                d = r("a", aL + 4 * j, 4)
                self.add(f"{M} {d}, {r('a', aONE, 4)}, {P}, {'0' if z else d}", s, 16)
        self.add(None, NITEM + 1, 0)

    def add(self, mfma, slot, g):
        self.idx[(slot, g)] = len(self.gaps)
        self.gaps.append(Gap(mfma, slot, g))

    def at(self, slot, g):
        while (slot, g) not in self.idx:
            g += 1
            if g > 16:
                slot, g = slot + 1, 0
        return self.idx[(slot, g)]

    def place(self, text, kind, units, lo, hi=None, what=""):
        n = len(self.gaps) - 1
        k = lo
        while True:
            gp = self.gaps[k]
            if k == n:
                break
            if kind == "s":
                if gp.free_s() >= 1:
                    break
            elif gp.free_v() >= units:
                break
            k += 1
        if hi is not None and k > hi:
            raise Exception(f"deadline miss {what or text}: lo={lo} hi={hi} got {k}")
        if k == n:
            gp.v.append(text)
        elif kind == "s":
            gp.s.append(text)
        else:
            (gp.m if kind == "m" else gp.v).append(text)
            gp.units += units
        return k

    def stream(self, ops, lo, hi=None, what=""):
        k = lo
        prevkind = None
        rank = {"s": 0, "m": 1, "v": 2}
        for text, kind, units, sep in ops:
            start = k + sep
            if prevkind is not None and sep == 0 and rank[kind] < rank[prevkind]:
                start = k + 1
            start = min(start, len(self.gaps) - 1)
            k = self.place(text, kind, units, start, hi, what)
            prevkind = kind
        return k

    def place_softmax(self):
        for i in range(NITEM):
            S = vS + 8 * (i & 1)
            P = vP + 4 * (i & 1)
            lo = self.at(i, 0)
            if i == 0 or i == NITEM - 1:
                ops = []
                for e in range(8):
                    ops.append((f"v_exp_f32 v{S+e}, v{S+e}", "v", 2, 0))
                    if e & 1:
                        ops.append((f"v_cvt_pk_bf16_f32 v{P+e//2}, v{S+e-1}, v{S+e}", "v", 1, 1))
                if i == 0:
                    self.sm0 = [x[0] for x in ops if "exp" in x[0]] + ["s_nop 0"] + [x[0] for x in ops if "cvt" in x[0]]
                else:
                    self.smlast = [x[0] for x in ops]
                continue
            for e in range(8):
                k = self.idx[(i, 2 * e)]
                self.place(f"v_exp_f32 v{S+e}, v{S+e}", "v", 2, k, k)
                if e & 1:
                    k = self.idx[(i, 2 * e + 1)]
                    self.place(f"v_cvt_pk_bf16_f32 v{P+e//2}, v{S+e-1}, v{S+e}", "v", 1, k, k)

    def kread(self, t, f):
        sl = t % 10
        kb, ks = f >> 2, f & 3
        return f"ds_read_b128 {r('a', aK+4*f, 4)}, v{vKA[sl//4]} offset:{(sl%4)*16384 + kb*8192 + ks*256}"

    def vread(self, t, f, h):
        sl = t % 10
        u, e = f >> 1, f & 1
        return f"ds_read_b64_tr_b16 {r('a', aV+4*f+2*h, 2)}, v{vVA[sl//4]} offset:{(sl%4)*16384 + h*8192 + u*256 + e*8}"

    def place_reads(self):
        self.need = {}
        for t in range(1, 32):
            s = first(t) - 2
            for f in range(8):
                lo = self.idx[(s, f)]
                use = self.idx[(s + 1, f)]
                txt = self.kread(t, f)
                self.place(txt, "m", 1, lo, use - 5, "kread")
                self.need.setdefault(use, []).append(txt)
        for t in range(0, 32):
            s = first(t)
            for f in range(8):
                use = self.idx[(s + 1, 8 + f)]
                lo = self.idx[(s, 8 + f)] if t > 0 else self.idx[(1, 0)]
                for h in range(2):
                    txt = self.vread(t, f, h)
                    if t == 0:
                        self.v0reads.append(txt)
                    else:
                        self.place(txt, "m", 1, lo, use - 5, "vread")
                        self.need.setdefault(use, []).append(txt)

    def dma(self, t, which):
        u = unit_of(t)
        fl = self.o["ldflag"] if t < 16 else self.o["reflag"]
        if t < 6 and self.o.get("keepflag") is not None:
            fl = self.o["keepflag"]
        out = []
        if "k" in which:
            out += [f"buffer_load_dwordx4 v{vDK}, s[{sK}:{sK+3}], s{sUNIT+u} offen offset:{o} {fl} lds ; K{t}" for o in (0, 1024)]
        if "v" in which:
            out += [f"buffer_load_dwordx4 v{vDV}, s[{sV}:{sV+3}], s{sUNIT+u} offen offset:{o} {fl} lds ; V{t}" for o in (2048, 3072)]
        return out

    def m0(self, t):
        return f"s_add_u32 m0, s{sW4K}, {(t % 10) * 16384}"

    def qload(self, job, j):
        return [f"buffer_load_dwordx4 {Qreg(job, j, ks)}, v{vQO}, s[{sQ}:{sQ+3}], s{sROW + job*NT1 + j} offen offset:{ks*64} {self.o['qflag']} ; Q{job}_{j}"
                for ks in range(4)]

    def scale_v(self, j):
        out = []
        for k in range(16):
            q = vQ1 + 16 * j + k
            a, b = vT + 2 * (k & 1), vT + 2 * (k & 1) + 1
            out += [f"v_lshlrev_b32 v{a}, 16, v{q}", f"v_and_b32 v{b}, s{sMASK}, v{q}",
                    f"v_mul_f32 v{a}, s{sC}, v{a}", f"v_mul_f32 v{b}, s{sC}, v{b}",
                    f"v_cvt_pk_bf16_f32 v{q}, v{a}, v{b}"]
        return out

    def scale_a(self, j):
        out = []
        for k in range(16):
            q = aQ2 + 16 * j + k
            a, b = vT, vT + 1
            out += [f"v_accvgpr_read_b32 v{b}, a{q}", f"v_lshlrev_b32 v{a}, 16, v{b}", f"v_and_b32 v{b}, s{sMASK}, v{b}",
                    f"v_mul_f32 v{a}, s{sC}, v{a}", f"v_mul_f32 v{b}, s{sC}, v{b}",
                    f"v_cvt_pk_bf16_f32 v{a}, v{a}, v{b}", f"v_accvgpr_write_b32 a{q}, v{a}"]
        return [(x, "v", 1, 0) for x in out]

    def lsum_ops(self, j):
        R = vR + j
        t = vT + 2
        return [(f"v_accvgpr_read_b32 v{R}, a{aL+4*j}", "v", 1, 0),
                (f"v_subrev_u32 v{t}, s{sLO}, v{R}", "v", 1, 0),
                (f"v_cmp_lt_u32 vcc, s{sRNG}, v{t}", "v", 1, 0),
                (f"v_rcp_f32 v{R}, v{R}", "v", 2, 0),
                (f"s_or_b64 s[{sFLAG}:{sFLAG+1}], s[{sFLAG}:{sFLAG+1}], vcc", "s", 0, 1)]

    def drain_ops(self, job, j):
        cls, ob = Obase(job, j)
        R = vR + j
        ops = []
        for u in range(4):
            if cls == "v":
                b = ob + 8 * u
            else:
                b = vT + 8 + 8 * (u & 1)
                for k in range(8):
                    ops.append((f"v_accvgpr_read_b32 v{b+k}, a{ob+8*u+k}", "v", 1, 0))
            for k in range(8):
                ops.append((f"v_mul_f32 v{b+k}, v{R}, v{b+k}", "v", 1, 0))
            for k in range(4):
                ops.append((f"v_cvt_pk_bf16_f32 v{b+k}, v{b+2*k}, v{b+2*k+1}", "v", 1, 0))
            ops.append((f"buffer_store_dwordx4 {r('v', b, 4)}, v{vQO}, s[{sO}:{sO+3}], s{sROW + job*NT1 + j} offen offset:{u*64} {self.o['stflag'] if job == 0 else self.o.get('stflag2', self.o['stflag'])} ; O{job}_{j}", "m", 2, 1))
        return ops

    def barrier_gap(self, t):
        return self.at(first(t) - 3, 16)

    def schedule(self):
        o = self.o
        self.v0reads = []
        self.build_gaps()
        G = self.gaps
        self.bars = {}
        bar_ts = list(range(1, 16)) + list(o["bar2"])
        for t in bar_ts:
            k = self.barrier_gap(t)
            self.bars[t] = k
            if t == 1 and o["b1late"]:
                continue
            tag = f"V{t}" if t < 16 else None
            if t == 1:
                tag = o["b1"]
            if t >= 26:
                tag = "V%d" % (min([b for b in bar_ts if b > t] + [32]) - 1)
            G[k].s.append(f"@VMWAIT {tag}" if tag else "s_nop 0")
            G[k].s.append("s_barrier")
            G[k].locked = True
        if o["b1"] == "K1":
            k = self.idx[(first(1) - 1, 16)]
            G[k].s += ["@VMWAIT V1", "s_barrier"]
            G[k].locked = True
        self.place_softmax()
        self.place_reads()
        def grp(names):
            out = []
            for nm in names:
                if nm[0] == "Q":
                    out += self.qload(0, int(nm[1:]))
                else:
                    out += [self.m0(int(nm[1:])), "s_nop 0"] + self.dma(int(nm[1:]), {"K": "k", "V": "v", "U": "kv"}[nm[0]])
            return out
        st = [x.split() for x in o["start"].split("|")]
        self.init_groups = grp(st[0])
        G[self.idx[(-1, 0)]].pre += (["@VMWAIT Q0_0"] + grp(st[1]) + self.scale_v(0) + ["@VMWAIT K0", "s_barrier"] +
                                     [self.kread(0, f) for f in range(8)] + ["s_waitcnt lgkmcnt(0)"])
        G[self.idx[(0, 0)]].pre += ["@VMWAIT Q0_1"] + grp(st[2]) + self.scale_v(1) + ["s_nop 1"]
        G[self.idx[(1, 0)]].pre += (self.sm0 + ["@VMWAIT V0", "s_barrier"] + self.v0reads +
                                    ["@VMWAIT Q0_2"] + grp(st[3]) + self.scale_v(2) + ["s_waitcnt lgkmcnt(0)"])
        for j in range(3, NT1):
            G[self.idx[(j - 1, 0)]].pre += [f"@VMWAIT Q0_{j}"] + grp(st[j + 1]) + self.scale_v(j) + ["s_nop 1"]
        if o["b1late"]:
            G[self.idx[(NT1 - 2, 0)]].pre += ["@VMWAIT K1", "s_barrier"]
        self.insert_lgkm_waits()
        k = 0
        order = []
        for ent in o["sched"].split():
            p = ent.split(":")
            sl, gname = float(p[0]), p[1]
            sp = int(p[2]) if len(p) > 2 else o["space"]
            lo = max(k + 1, self.at(int(sl), int(round((sl - int(sl)) * 17))))
            t = int(gname[1:])
            if gname[0] == "q":
                ops = [(x, "m", 2, sp) for x in self.qload(1, t)]
                ops[0] = ops[0][:3] + (0,)
            else:
                if t >= 10:
                    bt = min(b for b in self.bars if b >= t - 9)
                    lo = max(lo, self.bars[bt] + 1)
                ops = [(self.m0(t), "s", 0, 0)] + [(x, "m", 2, sp) for x in self.dma(t, "kv")]
                ops[1] = ops[1][:3] + (1,)
            k = self.stream(ops, lo, what=gname)
            order.append((gname, k))
        self.order = order
        q2bar = {}
        for n, (gname, kk) in enumerate(order):
            if gname[0] == "q":
                q2bar[int(gname[1:])] = self.place(f"@VMWAIT Q1_{gname[1:]}", "s", 0, kk + int(o["qdelay"] * 17))
        for gname, kk in order:
            if gname[0] == "U":
                t = int(gname[1:])
                bt = max(b for b in self.bars if b <= t)
                assert kk < self.bars[bt], (gname, "issued after its barrier")
        for (wt, wsel) in o.get("wbl2", ()):
            G[self.idx[(first(wt), 0)]].pre += [f"s_lshr_b32 s3, s2, 3", f"s_lshl_b32 s3, s3, 16", f"s_or_b32 s3, s3, s{sW4K}", f"s_cmp_eq_u32 s3, {wsel << 16}",
                                                f"s_cbranch_scc0 L_nowb{wt}", "buffer_wbl2 sc1", f"L_nowb{wt}:"]
        k = 0
        for n in range(NT2):
            lo = max(k, q2bar[n] + 1)
            hi = self.idx[(J2 + n - 1, 0)] - 2
            k = self.stream(self.scale_a(n), lo, hi, f"scale{n}")
        self.scale_end = k
        lend = {}
        k = 0
        for j in range(NT1):
            fin = self.idx[(first(15) + j + 1, 16)]
            hi = self.idx[(first(16) + j + 1, 16)] - 2 if j < NT2 else None
            k = self.stream(self.lsum_ops(j)[:1], max(k, fin + 5), hi, "lsum")
            lend[j] = k
        k = 0
        for j in range(NT1):
            hi = self.idx[(J2 + 3 + 1, 8)] - 2 if j == 0 else None
            k = self.stream(self.lsum_ops(j)[1:], max(k, lend[j]), hi, f"lrest{j}")
            k = self.stream(self.drain_ops(0, j), k, hi, f"drain{j}")
        self.drain1_end = k
        kk = self.at(NITEM - 1, 0)
        ops = []
        S = vS + 8 * ((NITEM - 1) & 1)
        for x in self.smlast:
            ops.append((x, "v", 2 if "exp" in x else 1, 0 if "exp" in x else 1))
        placed = 0
        lastg = self.idx[(NITEM, 8)]
        rest = []
        kcur = kk
        for op in ops:
            ok = False
            if not rest:
                kt = kcur + op[3]
                while kt < lastg and G[kt].free_v() < op[2]:
                    kt += 1
                if kt < lastg:
                    self.place(op[0], "v", op[2], kt, kt)
                    kcur = kt
                    ok = True
            if not ok:
                rest.append(op[0])
        G[lastg].pre += [x for x in rest if "exp" in x] + ["s_nop 0"] + [x for x in rest if "cvt" in x] + ["s_nop 1"]
        k = max(k, 0)
        for j in range(NT2):
            fin = self.idx[(first(31) + j + 1, 16)]
            if j == NT2 - 1:
                self.gaps[-1].v.append("s_nop 7")
                lo = len(G) - 1
            else:
                lo = fin + 5
            k = self.stream(self.lsum_ops(j), max(k, min(lo, len(G) - 1)), None, "lsum2")
            if k == len(G) - 1:
                self.gaps[-1].v.append("s_nop 0")
            k = self.stream(self.drain_ops(1, j), min(k + 1, len(G) - 1), None, "drain2")

    def insert_lgkm_waits(self):
        G = self.gaps
        issued = []
        done = 0
        for k, gp in enumerate(G):
            for x in gp.pre:
                if x.startswith("ds_"):
                    issued.append(x)
                if x.startswith("s_waitcnt lgkmcnt(0)"):
                    done = len(issued)
            nd = self.need.get(k + 1, [])
            if nd:
                pos = max(len(issued) - 1 - issued[::-1].index(x) for x in nd)
                if pos >= done:
                    n = len(issued) - 1 - pos
                    assert n <= 15
                    w = f"s_waitcnt lgkmcnt({n})"
                    if gp.locked:
                        gp.s.insert(0, w)
                    else:
                        if gp.free_s() < 1:
                            print(f"; note: gap {gp.slot},{gp.g} overfull by lgkm wait", file=sys.stderr)
                        gp.s.insert(0, w)
                    done = pos + 1
            for x in gp.m:
                if x.startswith("ds_"):
                    issued.append(x)

    def prologue(self):
        o = self.o
        L = []
        a = L.append
        if o["stamps"]:
            a("s_memrealtime s[90:91]"); a("s_memtime s[92:93]")
        a("s_cmp_ge_u32 s2, 256")
        a("s_cbranch_scc1 L_exit")
        a("s_load_dwordx8 s[4:11], s[0:1], 0")
        if o["stamps"]:
            a("s_load_dwordx4 s[12:15], s[0:1], 32")
        a(f"v_lshrrev_b32 v10, 6, v0              ; wave")
        a(f"v_and_b32 v11, 63, v0                 ; lane")
        a(f"v_readfirstlane_b32 s{sTMP}, v10")
        a(f"v_and_b32 v12, 15, v0                 ; i")
        a(f"v_lshrrev_b32 v13, 4, v11             ; g")
        a(f"v_and_b32 v14, 3, v0                  ; lane&3")
        a(f"v_bfe_u32 v15, v0, 2, 2               ; (lane>>2)&3")
        a(f"s_lshl_b32 s{sW4K}, s{sTMP}, 12")
        a(f"v_lshlrev_b32 v{vQO}, 8, v12")
        a(f"v_lshl_add_u32 v{vQO}, v13, 4, v{vQO}")
        a(f"v_lshl_add_u32 v{vQO}, v10, 12, v{vQO}")
        a(f"v_lshlrev_b32 v16, 1, v10")
        a(f"v_and_b32 v16, 2, v16")
        a(f"v_xor_b32 v16, v16, v15")
        a(f"v_lshlrev_b32 v17, 11, v10")
        a(f"v_lshl_add_u32 v17, v13, 6, v17       ; w*2048 + g*64")
        a(f"v_lshl_add_u32 v{vDK}, v14, 8, v17")
        a(f"v_lshl_add_u32 v{vDK}, v16, 4, v{vDK}")
        a(f"v_lshl_add_u32 v{vDV}, v15, 8, v17")
        a(f"v_lshl_add_u32 v{vDV}, v14, 4, v{vDV}")
        a(f"s_mul_i32 s{sTMP}, s2, 155648")
        a(f"s_lshl_b32 s3, s2, 17")
        a(f"s_mov_b32 s{sK+2}, 131072")
        a(f"s_mov_b32 s{sK+3}, 0x20000")
        a(f"s_mov_b32 s{sQ+2}, 155648")
        a(f"s_mov_b32 s{sQ+3}, 0x20000")
        a(f"s_mov_b32 s{sV+2}, {131072+2048}")
        a(f"s_mov_b32 s{sV+3}, 0x20000")
        a(f"s_mov_b32 s{sO+2}, 155648")
        a(f"s_mov_b32 s{sO+3}, 0x20000")
        for u in range(16):
            a(f"s_mov_b32 s{sUNIT+u}, {u*8192}")
        for j in range(NT1 + NT2):
            a(f"s_mov_b32 s{sROW+j}, {j*16384}")
        if o["prefetch"]:
            a("s_getpc_b64 s[72:73]")
            a("L_pc:")
            if o["touch"]:
                a("s_add_u32 s72, s72, L_main-L_pc")
                a("s_addc_u32 s73, s73, 0")
            a("s_lshr_b32 s74, s2, 3")
            a("s_and_b32 s74, s74, 31")
            a("s_lshl_b32 s74, s74, 11")
            a("v_lshlrev_b32 v18, 9, v10")
            a("v_lshl_add_u32 v18, v14, 7, v18")
            a("v_add_u32 v18, s74, v18")
            a("v_min_u32 v18, L_codeend-%s-4, v18" % ("L_main" if o["touch"] else "L_pc"))
            a(f"global_load_dword v{vT+23}, v18, s[72:73] ; PF")
        a("s_waitcnt lgkmcnt(0)")
        a(f"s_add_u32 s{sK}, s6, s3")
        a(f"s_addc_u32 s{sK+1}, s7, 0")
        a(f"s_add_u32 s{sQ}, s4, s{sTMP}")
        a(f"s_addc_u32 s{sQ+1}, s5, 0")
        a(f"s_add_u32 s{sV}, s8, s3")
        a(f"s_addc_u32 s{sV+1}, s9, 0")
        a(f"s_sub_u32 s{sV}, s{sV}, 2048")
        a(f"s_subb_u32 s{sV+1}, s{sV+1}, 0")
        L += self.init_groups
        a(f"s_add_u32 s{sO}, s10, s{sTMP}")
        a(f"s_addc_u32 s{sO+1}, s11, 0")
        a(f"v_lshrrev_b32 v16, 1, v15")
        a(f"v_and_b32 v17, 1, v15")
        a(f"v_lshlrev_b32 v18, 12, v16")
        a(f"v_lshl_add_u32 v18, v17, 10, v18")
        a(f"v_and_b32 v16, 2, v15")
        a(f"v_xor_b32 v16, v16, v13")
        a(f"v_lshl_add_u32 v18, v16, 6, v18")
        a(f"v_lshl_add_u32 v{vKA[0]}, v14, 4, v18")
        a(f"v_add_u32 v{vKA[1]}, 0x10000, v{vKA[0]}")
        a(f"v_add_u32 v{vKA[2]}, 0x20000, v{vKA[0]}")
        a(f"v_lshrrev_b32 v16, 1, v13")
        a(f"v_and_b32 v17, 1, v13")
        a(f"v_lshlrev_b32 v18, 12, v16")
        a(f"v_lshl_add_u32 v18, v17, 10, v18")
        a(f"v_lshl_add_u32 v18, v12, 4, v18      ; (i>>2)*64+(i&3)*16 = i*16")
        a(f"v_add_u32 v{vVA[0]}, 2048, v18")
        a(f"v_add_u32 v{vVA[1]}, 0x10000, v{vVA[0]}")
        a(f"v_add_u32 v{vVA[2]}, 0x20000, v{vVA[0]}")
        a(f"v_mov_b32 v16, 0x3f803f80")
        for k in range(4):
            a(f"v_accvgpr_write_b32 a{aONE+k}, v16")
        a(f"s_mov_b32 s{sC}, {C_SCALE:#x}")
        a(f"s_mov_b32 s{sMASK}, 0xffff0000")
        a(f"s_mov_b32 s{sLO}, {L_LO:#x}")
        a(f"s_mov_b32 s{sRNG}, {L_HI-L_LO:#x}")
        a(f"s_mov_b64 s[{sFLAG}:{sFLAG+1}], 0")
        return L

    def linear(self):
        L = self.prologue() + (["@VMWAIT PF"] if self.o["prefetch"] else []) + ["@MAIN"]
        st = self.o["stamps"]
        tl = {self.idx[(first(t), 0)]: t for t in range(32)} if self.o.get("timeline") else {}
        tl_end = self.idx[(NITEM - 1, 8)]
        for k, gp in enumerate(self.gaps):
            if k in tl:
                if tl[k] > 0:
                    L += ["s_waitcnt lgkmcnt(0)", f"v_writelane_b32 v47, s74, {tl[k]-1}", f"v_writelane_b32 v47, s72, {tl[k]-1+32}"]
                L += ["s_memtime s[74:75]", "s_memrealtime s[72:73]"] if tl[k] > 0 else []
                if tl[k] == 0:
                    gp.pre = gp.pre + ["s_memtime s[74:75]", "s_memrealtime s[72:73]"]
            if tl and k == tl_end:
                L += ["s_waitcnt lgkmcnt(0)", f"v_writelane_b32 v47, s74, 31", f"v_writelane_b32 v47, s72, 63"]
            if st and k == self.idx[(4, 0)]:
                L += gp.pre + ["s_memrealtime s[84:85]", "s_memtime s[86:87]"]
            elif st and k == self.idx[(J2, 0)]:
                L += gp.pre + ["s_memrealtime s[82:83]"]
            elif st and gp.mfma is None:
                L += gp.pre + ["s_memrealtime s[88:89]", "s_memtime s[80:81]"]
            else:
                L += gp.pre
            if gp.mfma:
                if gp.g == 0 or (gp.slot >= NITEM - 1 and gp.g == 8):
                    L.append(f"; ---- slot {gp.slot}")
                L.append(gp.mfma)
            L += gp.s + gp.m + gp.v
        out = []
        vm = []
        done = 0
        self.maxout = 0
        for x in L:
            if x.startswith("@VMWAIT"):
                tag = x.split()[1]
                pos = max(n for n, y in enumerate(vm) if y == tag)
                n = len(vm) - 1 - pos
                assert n <= 63, (tag, n)
                if pos >= done:
                    done = pos + 1
                out.append(f"s_waitcnt vmcnt({n})")
                continue
            if x.startswith(("buffer_", "global_")) and not x.startswith("buffer_wbl2"):
                vm.append(x.split(";")[-1].strip())
                self.maxout = max(self.maxout, len(vm) - done)
            out.append(x)
        return out

    def slow_path(self):
        L = []
        a = L.append
        M = "v_mfma_f32_16x16x32_bf16"
        a("L_slow:")
        a("s_waitcnt vmcnt(0)")
        a("v_and_b32 v12, 15, v0")
        a("v_bfe_u32 v13, v0, 4, 2")
        a("v_lshlrev_b32 v2, 8, v12")
        a("v_lshl_add_u32 v2, v13, 4, v2           ; K offset")
        a("v_lshlrev_b32 v3, 1, v12")
        a("v_lshl_add_u32 v3, v13, 10, v3")
        a("v_add_u32 v3, 2048, v3")
        a("v_lshlrev_b32 v4, 8, v12")
        a("v_lshl_add_u32 v4, v13, 3, v4")
        a(f"v_add_u32 v4, s{sW4K}, v4")
        a("s_mov_b32 s76, 0")
        a("L_slow_sub:")
        for ks in range(4):
            a(f"buffer_load_dwordx4 v[{64+4*ks}:{67+4*ks}], v{vQO}, s[{sQ}:{sQ+3}], s76 offen offset:{ks*64}")
        a("v_mov_b32 v5, 0xff800000")
        a("s_mov_b32 s77, 0")
        a("L_slow_max:")
        for pas in range(2):
            if pas == 1:
                a("v_mov_b32 v6, v5")
                a("s_nop 1")
                a("v_permlane32_swap_b32 v5, v6")
                a("s_nop 1")
                a("v_max_f32 v5, v5, v6")
                a("v_mov_b32 v6, v5")
                a("s_nop 1")
                a("v_permlane16_swap_b32 v5, v6")
                a("s_nop 1")
                a("v_max_f32 v5, v5, v6")
                a(f"v_mul_f32 v5, s{sC}, v5")
                a("v_mov_b32 v7, 0")
                for k in range(32):
                    a(f"v_mov_b32 v{96+k}, 0")
                a("s_mov_b32 s77, 0")
                a("L_slow_pv:")
            a("s_add_u32 s78, s77, 4096")
            for f in range(8):
                a(f"buffer_load_dwordx4 v[{128+4*f}:{131+4*f}], v2, s[{sK}:{sK+3}], s{77 + (f >> 2)} offen offset:{(f & 3)*64}")
            if pas == 1:
                for f in range(8):
                    for jj in range(8):
                        a(f"buffer_load_ushort v{160+8*f+jj}, v3, s[{sV}:{sV+3}], s{77 + (jj >> 2)} offen offset:{(jj & 3)*256 + f*32}")
                    if f == 3:
                        a("s_waitcnt vmcnt(16)")
            a("s_waitcnt vmcnt(0)")
            for f in range(8):
                kb, ks = f >> 2, f & 3
                d = f"v[{16+4*kb}:{19+4*kb}]"
                a(f"{M} {d}, v[{128+4*f}:{131+4*f}], v[{64+4*ks}:{67+4*ks}], {'0' if ks == 0 else d}")
            a("s_nop 7")
            a("s_nop 1")
            if pas == 0:
                for k in range(0, 8, 2):
                    a(f"v_max3_f32 v5, v5, v{16+k}, v{17+k}")
                a("s_add_u32 s77, s77, 8192")
                a("s_cmp_lt_u32 s77, 131072")
                a("s_cbranch_scc1 L_slow_max")
            else:
                for k in range(8):
                    a(f"v_fma_f32 v{16+k}, v{16+k}, s{sC}, -v5")
                for k in range(8):
                    a(f"v_exp_f32 v{16+k}, v{16+k}")
                a("s_nop 0")
                for k in range(8):
                    a(f"v_add_f32 v7, v7, v{16+k}")
                for k in range(4):
                    a(f"v_cvt_pk_bf16_f32 v{32+k}, v{16+2*k}, v{17+2*k}")
                for k in range(32):
                    a(f"v_lshl_or_b32 v{224+k}, v{161+2*k}, 16, v{160+2*k}")
                a("s_nop 1")
                for f in range(8):
                    d = f"v[{96+4*f}:{99+4*f}]"
                    a(f"{M} {d}, v[{224+4*f}:{227+4*f}], v[32:35], {d}")
                a("s_add_u32 s77, s77, 8192")
                a("s_cmp_lt_u32 s77, 131072")
                a("s_cbranch_scc1 L_slow_pv")
        a("v_mov_b32 v6, v7")
        a("s_nop 1")
        a("v_permlane32_swap_b32 v7, v6")
        a("s_nop 1")
        a("v_add_f32 v7, v7, v6")
        a("v_mov_b32 v6, v7")
        a("s_nop 1")
        a("v_permlane16_swap_b32 v7, v6")
        a("s_nop 1")
        a("v_add_f32 v7, v7, v6")
        a("v_rcp_f32 v7, v7")
        a("s_nop 7")
        for k in range(32):
            a(f"v_mul_f32 v{96+k}, v7, v{96+k}")
        for k in range(16):
            a(f"v_cvt_pk_bf16_f32 v{128+k}, v{96+2*k}, v{97+2*k}")
        for f in range(8):
            a(f"buffer_store_dwordx2 v[{128+2*f}:{129+2*f}], v4, s[{sO}:{sO+3}], s76 offen offset:{f*32}")
        a("s_waitcnt vmcnt(0)")
        a("s_add_u32 s76, s76, 16384")
        a(f"s_cmp_lt_u32 s76, {16384*(NT1+NT2)}")
        a("s_cbranch_scc1 L_slow_sub")
        return L

    def stamp_out(self):
        if self.o["stamps"] == "dbg":
            L = ["s_waitcnt vmcnt(0) lgkmcnt(0)", "s_memrealtime s[94:95]", "s_memtime s[96:97]", "s_waitcnt lgkmcnt(0)",
                 "s_mov_b32 s76, s12", "s_mov_b32 s77, s13", "s_mov_b32 s78, 256", "s_mov_b32 s79, 0x20000",
                 "v_and_b32 v2, 63, v0", "v_lshlrev_b32 v1, 2, v2", "v_mov_b32 v4, 0"]
            for n, sr in enumerate([90, 84, 82, 88, 94]):
                L += [f"s_not_b32 s3, s{sr}", f"v_writelane_b32 v4, s3, {2*n}", f"v_writelane_b32 v4, s{sr}, {2*n+1}"]
            L += ["s_sub_u32 s3, s80, s86", "v_writelane_b32 v4, s3, 10", "s_not_b32 s3, s3", "v_writelane_b32 v4, s3, 12", "s_sub_u32 s3, s96, s92", "v_writelane_b32 v4, s3, 11"]
            L += ["v_cmp_gt_u32 vcc, 16, v2", "s_and_saveexec_b64 s[98:99], vcc", "buffer_atomic_umax v4, v1, s[76:79], 0 offen"]
            return L
        L = ["s_waitcnt vmcnt(0) lgkmcnt(0)", "s_memrealtime s[94:95]", "s_memtime s[96:97]", "s_waitcnt lgkmcnt(0)",
             "s_mov_b32 s76, s14", "s_mov_b32 s77, s15", "s_mov_b32 s78, 0x1000000", "s_mov_b32 s79, 0x20000",
             "v_lshrrev_b32 v1, 6, v0", "v_lshlrev_b32 v1, 6, v1", "s_lshl_b32 s3, s2, 8", "v_add_u32 v1, s3, v1"]
        for n, s in enumerate([90, 91, 92, 93, 94, 95, 96, 97, 84, 85, 86, 82, 88, 89, 80, 81]):
            L.append(f"v_mov_b32 v{4+n}, s{s}")
        if self.o.get("timeline"):
            L += ["v_lshlrev_b32 v2, 2, v0", "s_lshl_b32 s3, s2, 10", "s_add_u32 s3, s3, 0x100000", "buffer_store_dword v47, v2, s[76:79], s3 offen"]
        L += ["v_and_b32 v2, 63, v0", "v_cmp_eq_u32 vcc, 0, v2", "s_and_saveexec_b64 s[98:99], vcc"]
        for n in range(4):
            L.append(f"buffer_store_dwordx4 v[{4+4*n}:{7+4*n}], v1, s[76:79], 0 offen offset:{16*n}")
        return L

    def text(self):
        self.schedule()
        body = self.linear()
        verify([x for x in body if x != "@MAIN"])
        tail = [f"s_cmp_lg_u64 s[{sFLAG}:{sFLAG+1}], 0", "s_cbranch_scc1 L_slow"] if self.o["slow"] else []
        if self.o.get("forceslow"):
            tail = ["s_branch L_slow"]
        tail += ["L_done:"]
        if self.o["stamps"]:
            tail += self.stamp_out()
        tail += ["L_exit:", "s_endpgm", "L_codeend:"]
        cut = body.index("@MAIN")
        if self.o["touch"]:
            main, chain = add_markers(body[cut + 1:] + tail)
            body = body[:cut] + chain + ["s_branch L_main", ".p2align 12", "L_main:"] + main
            tail = []
        else:
            body = body[:cut] + body[cut + 1:]
        if self.o["slow"]:
            sp = self.slow_path()
            verify(sp)
            tail += sp + ["s_branch L_done"]
        hdr = open("header.txt").read()
        fmt = lambda x: (x if x.endswith(":") or x.startswith((";", ".")) else "    " + x)
        return (hdr + f""".amdgcn_target "amdgcn-amd-amdhsa--gfx950"
.text
.globl {KN}
.p2align 8
.type {KN},@function
{KN}:
""" + "\n".join(fmt(x) for x in body + tail) + f"""
.section .rodata,"a"
.p2align 6
.amdhsa_kernel {KN}
  .amdhsa_next_free_vgpr 512
  .amdhsa_next_free_sgpr 102
  .amdhsa_accum_offset 256
  .amdhsa_group_segment_fixed_size 0
  .amdhsa_kernarg_size 48
  .amdhsa_user_sgpr_count 2
  .amdhsa_user_sgpr_kernarg_segment_ptr 1
  .amdhsa_system_sgpr_workgroup_id_x 1
.end_amdhsa_kernel
""")


def isize(x):
    x = x.split(";")[0].strip()
    if not x or x.endswith(":") or x.startswith("."):
        return 0
    op, _, rest = x.partition(" ")
    if op.startswith(("v_mfma", "ds_", "buffer_", "global_", "v_accvgpr", "v_cvt_pk", "v_fma", "v_lshl_add", "v_lshl_or", "v_bfe", "v_max3",
                      "v_writelane", "v_pk_", "s_load", "s_mem", "v_add3", "v_mul_lo", "v_perm_")):
        return 8
    if "_dpp" in op or "row_" in rest or "quad_perm" in rest:
        return 8
    if op.startswith(("s_waitcnt", "s_nop", "s_barrier", "s_cbranch", "s_branch", "s_endpgm", "s_setprio", "s_sleep")):
        return 4
    for t in rest.split(","):
        t = t.strip().split()[0] if t.strip() else ""
        if re.fullmatch(r"-?(0x[0-9a-fA-F]+|\d+)", t):
            v = int(t, 0)
            if not -16 <= v <= 64:
                return 8
        elif t.startswith("L_"):
            return 8
    return 4


def add_markers(L, nw=4):
    out, addr, page, marks = [], 0, 1, []
    n = 0
    while n < len(L):
        x = L[n]
        if addr >= page * 4096:
            best, a2 = None, addr
            for m in range(n, len(L)):
                if a2 + 4 > page * 4096 + 64:
                    break
                prev = L[m - 1] if m > n else (out[-1] if out else "")
                if prev.startswith("v_mfma") and not L[m].startswith(("s_", "@")) and isize(L[m]):
                    best = m
                    break
                a2 += isize(L[m])
            if best is None:
                best = n
            for m in range(n, best):
                out.append(L[m]); addr += isize(L[m])
            marks.append(len(out))
            out.append(None); addr += 4
            n = best
            page += 1
            continue
        out.append(x); addr += isize(x); n += 1
    per = (len(marks) + nw - 1) // nw
    res = []
    mi = {p: k for k, p in enumerate(marks)}
    for k, x in enumerate(out):
        if x is None:
            m = mi[k]
            last = (m + 1) % per == 0 or m + 1 == len(marks)
            res += [f"L_m{m}:", f"s_cbranch_execz {'L_back' if last else 'L_m%d' % (m + 1)}"]
        else:
            res.append(x)
    chain = ["s_mov_b64 exec, 0"]
    for w in range(nw):
        if w * per < len(marks):
            chain += [f"s_cmp_eq_u32 s{sW4K}, {w * 4096}", f"s_cbranch_scc1 L_m{w * per}"]
    chain += ["L_back:", "s_mov_b64 exec, -1"]
    return res, chain


def regs(tok):
    tok = tok.strip().lstrip("-")
    m = re.fullmatch(r"([va])(\d+)", tok)
    if m:
        return {(m.group(1), int(m.group(2)))}
    m = re.fullmatch(r"([va])\[(\d+):(\d+)\]", tok)
    if m:
        return {(m.group(1), k) for k in range(int(m.group(2)), int(m.group(3)) + 1)}
    return set()


def parse(x):
    x = x.split(";")[0].strip()
    if not x or x.endswith(":"):
        return None
    op, _, rest = x.partition(" ")
    ops = [t.strip() for t in rest.split(",")]
    last = ops[-1].split()
    if last:
        ops[-1] = last[0]
    d = dict(op=op, w=set(), rd=set(), kind="s", c=set(), ws=1, m0w=False)
    if op == "s_nop":
        d["ws"] = int(ops[0]) + 1
    if op.startswith("s_") and ops and ops[0] == "m0":
        d["m0w"] = True
    if op.startswith("v_mfma"):
        d.update(kind="mfma", w=regs(ops[0]), rd=regs(ops[1]) | regs(ops[2]), c=regs(ops[3]))
    elif op.startswith("v_"):
        d["kind"] = "valu"
        if op.startswith("v_cmp") or op.startswith("v_readfirstlane"):
            d["rd"] = set().union(*[regs(t) for t in ops[1:]])
        elif op.startswith("v_permlane"):
            d["w"] = regs(ops[0]) | regs(ops[1]); d["rd"] = set(d["w"])
        else:
            d["w"] = regs(ops[0]); d["rd"] = set().union(*[regs(t) for t in ops[1:]])
        d["trans"] = op.startswith(("v_exp", "v_rcp"))
    elif op.startswith("ds_read"):
        d.update(kind="ds", w=regs(ops[0]), rd=regs(ops[1]))
    elif op.startswith("buffer_store"):
        d.update(kind="store", rd=regs(ops[0]) | regs(ops[1]), data=regs(ops[0]))
    elif op.startswith(("buffer_load", "global_load")):
        if " lds" in x:
            d.update(kind="dma", rd=regs(ops[0]))
        else:
            d.update(kind="load", w=regs(ops[0]), rd=regs(ops[1]))
    return d


def verify(L):
    ins = [(x, parse(x)) for x in L]
    ins = [(x, d) for x, d in ins if d]
    bad = 0
    for n, (x, d) in enumerate(ins):
        dist = 0
        for m in range(n - 1, max(-1, n - 14), -1):
            y, p = ins[m]
            need = 0
            if p["kind"] == "mfma":
                if d["kind"] == "mfma":
                    if p["w"] & d["rd"]:
                        need = 8
                    elif p["w"] & d["c"] and p["w"] != d["c"]:
                        need = 6
                    elif p["w"] & d["w"] and p["w"] != d["w"]:
                        need = 6
                elif p["w"] & (d["rd"] | d["w"]):
                    need = 8
                elif d["kind"] == "valu" and p["c"] & d["w"]:
                    need = 3
            elif p["kind"] == "valu":
                if d["kind"] == "mfma" and p["w"] & (d["rd"] | d["c"]):
                    need = 2
                elif d["kind"] == "valu" and p.get("trans") and not d.get("trans") and p["w"] & d["rd"]:
                    need = 1
                elif d["op"].startswith("v_permlane") and p["w"] & d["rd"]:
                    need = 2
                elif d["op"].startswith("v_readfirstlane") and p["w"] & d["rd"]:
                    need = 1
            elif p["kind"] == "store":
                if p["data"] & d["w"]:
                    need = 2
            elif p["m0w"] and d["kind"] == "dma":
                need = 1
            if dist < need:
                print(f"HAZARD need {need} have {dist}:\n   {y}\n   {x}", file=sys.stderr)
                bad += 1
            dist += p["ws"]
    assert bad == 0


if __name__ == "__main__":
    opt = {}
    out = sys.argv[1]
    for kv in sys.argv[2:]:
        k, v = kv.split("=", 1)
        try:
            v = eval(v)
        except Exception:
            pass
        opt[k] = v
    g = Gen(opt)
    t = g.text()
    open(out, "w").write(t)
    G = g.gaps
    print("   issue ends:", " ".join(f"{n}@{G[k].slot}" for n, k in g.order), file=sys.stderr)
    print(f"{out}: max vm outstanding {g.maxout}, scale ends slot {G[g.scale_end].slot}, drain1 ends at slot {G[g.drain1_end].slot}, tail instrs {len(G[-1].v)}, "
          f"free units job1 {sum(x.free_v() for x in G if x.slot < J2)}, job2 {sum(x.free_v() for x in G[:-1] if x.slot >= J2)}", file=sys.stderr)
```

```python
import sys, re, struct, math

KN = "standalone__mha_softmax__near_ridge_kernel"

vTID = 0
vQO = 1
vDK, vDV = 2, 3
vKA = [4, 5, 6]
vVA = [7, 8, 9]
vKB = [43, 44, 45]
vVB = [46, 47, 56]
vXW, vXR = 57, 58
vDIAG = 0
XBASE = 2 * 16384
vR = 10
vS = 16
vP = 32
vT = 40
vO1 = 64
vQ1 = 160
aO1 = 0
aK = 96
aV = 128
aQ2 = 160
aL = 224
aONE = 248

sQ, sK, sV, sO = 16, 20, 24, 28
sW4K = 32
sTMP = 33
sC = 34
sMASK = 35
sLO, sRNG = 38, 39
sFLAG = 40
sSWAP = 42
sROW = 44
sUNIT = 56

C_SCALE = struct.unpack("<I", struct.pack("<f", math.log2(math.e) / math.sqrt(128.0)))[0]
L_LO = (127 - 40) << 23
L_HI = (127 + 60) << 23

NT1, NT2 = 6, 4
J2 = 16 * NT1
STEPS, ITEMS, FIRST = [], [], []
NITEM = 0


def make_steps(m):
    global NITEM
    st = [(0, t, list(range(NT1))) for t in range(16)]
    X = lambda t: [3] if t % 2 == 0 else []
    st += [(1, t, [0, 1, 2] + X(t)) for t in range(16, 32 - m)]
    st += [(1, t, ([0, 1] + X(t)) if t < 30 else (X(t) + [0, 1])) for t in range(32 - m, 32)]
    st += [(1, t, [2]) for t in range(32 - m, 32)]
    STEPS[:] = st
    ITEMS[:] = []
    FIRST[:] = []
    for n, (job, t, subs) in enumerate(st):
        FIRST.append(len(ITEMS))
        ITEMS.extend((job, t, j, n) for j in subs)
    NITEM = len(ITEMS)
    FIRST.append(NITEM)


def item(i):
    return ITEMS[i][:3]


def first(n):
    return FIRST[n]


def last_item(job, j):
    return max(i for i, x in enumerate(ITEMS) if x[0] == job and x[2] == j)


def first_item(job, j):
    return min(i for i, x in enumerate(ITEMS) if x[0] == job and x[2] == j)


def unit_of(t):
    return t if t < 16 else (t - 10 if t < 26 else t - 26)


def r(cls, lo, n=1):
    return f"{cls}{lo}" if n == 1 else f"{cls}[{lo}:{lo+n-1}]"


def Qreg(job, j, ks):
    return r("v", vQ1 + 16 * j + 4 * ks, 4) if job == 0 else r("a", aQ2 + 16 * j + 4 * ks, 4)


def Obase(job, j):
    if job == 0:
        return ("v", vO1 + 32 * j) if j < 3 else ("a", aO1 + 32 * (j - 3))
    return ("v", vQ1 + 32 * j) if j < 3 else ("v", vO1)


class Gap:
    def __init__(self, mfma, slot, g):
        self.mfma = mfma
        self.slot, self.g = slot, g
        self.s, self.m, self.v = [], [], []
        self.units = 0
        self.pre = []
        self.locked = False
        self.extra = 0

    def free_v(self):
        return 0 if self.locked else min(2 - self.units, 3 - self.units - len(self.s)) + self.extra

    def cycles(self):
        return max(16, 8 + 4 * self.units, 4 + 4 * (self.units + len(self.s)))

    def free_s(self):
        return 0 if self.locked else (3 - self.units - len(self.s) if self.s else 1)


class Gen:
    def __init__(self, opt):
        self.o = dict(ldflag="nt", qflag="nt", stflag="sc1", reflag="", keepflag="", stamps=False, prefetch=True,
                      slow=True, touch=True, b1late=True, space=17, qdelay=14, m2=4, lat=5, d1end=134, blockgap=4,
                      sched="5:U4 9:U5 13:U6 17:q0 21:U7 25:U8 29:q1 33:U9 37:U10 41:q2 45:U11 49:U12 53:q3 57:U13 61:U14 65:U15 "
                            "103:U26:12 106:U27:12 110:U28:12 113:U29:12 117:U30:12 120:U31:12",
                      start="K0 Q0 Q1|V0 Q2|Q3|Q4|Q5 K1|V1 U2|U3", b1="K1")
        self.o.update(opt)
        self.gaps = []
        self.idx = {}

    def build_gaps(self):
        M = "v_mfma_f32_16x16x32_bf16"
        for s in range(-1, NITEM + 1):
            if s + 1 < NITEM:
                job, t, j = item(s + 1)
                S = vS + 8 * ((s + 1) & 1)
                for f in range(8):
                    kb, ks = f >> 2, f & 3
                    d = r("v", S + 4 * kb, 4)
                    c = "0" if ks == 0 else d
                    self.add(f"{M} {d}, {r('a', aK+4*f, 4)}, {Qreg(job, j, ks)}, {c}", s, f)
            if s - 1 >= 0:
                job, t, j = item(s - 1)
                P = r("v", vP + 4 * ((s - 1) & 1), 4)
                cls, ob = Obase(job, j)
                z = s - 1 == first_item(job, j)
                for f in range(8):
                    d = r(cls, ob + 4 * f, 4)
                    self.add(f"{M} {d}, {r('a', aV+4*f, 4)}, {P}, {'0' if z else d}", s, 8 + f)
                d = r("a", aL + 4 * j, 4)
                self.add(f"{M} {d}, {r('a', aONE, 4)}, {P}, {'0' if z else d}", s, 16)
        self.add(None, NITEM + 1, 0)

    def add(self, mfma, slot, g):
        self.idx[(slot, g)] = len(self.gaps)
        self.gaps.append(Gap(mfma, slot, g))

    def at(self, slot, g):
        while (slot, g) not in self.idx:
            g += 1
            if g > 16:
                slot, g = slot + 1, 0
        return self.idx[(slot, g)]

    def place(self, text, kind, units, lo, hi=None, what="", force=False):
        n = len(self.gaps) - 1
        k = lo
        while True:
            gp = self.gaps[k]
            if k == n:
                break
            if kind == "s":
                if gp.free_s() >= 1:
                    break
            elif gp.free_v() >= units:
                break
            k += 1
        if hi is not None and k > hi and force:
            cand = [x for x in range(lo, hi + 1) if not self.gaps[x].locked]
            k = min(cand, key=lambda x: (self.gaps[x].cycles(), x))
            gp = self.gaps[k]
        elif hi is not None and k > hi:
            raise Exception(f"deadline miss {what or text}: lo={lo} hi={hi} got {k}")
        if k == n:
            gp.v.append(text)
        elif kind == "s":
            gp.s.append(text)
        else:
            (gp.m if kind == "m" else gp.v).append(text)
            gp.units += units
        return k

    def stream(self, ops, lo, hi=None, what=""):
        k = lo
        prevkind = None
        rank = {"s": 0, "m": 1, "v": 2}
        for text, kind, units, sep in ops:
            start = k + sep
            if prevkind is not None and sep == 0 and rank[kind] < rank[prevkind]:
                start = k + 1
            start = min(start, len(self.gaps) - 1)
            k = self.place(text, kind, units, start, hi, what)
            prevkind = kind
        return k

    def place_softmax(self):
        for i in range(NITEM):
            S = vS + 8 * (i & 1)
            P = vP + 4 * (i & 1)
            lo = self.at(i, 0)
            if i == 0 or i == NITEM - 1:
                ops = []
                for e in range(8):
                    ops.append((f"v_exp_f32 v{S+e}, v{S+e}", "v", 2, 0))
                    if e & 1:
                        ops.append((f"v_cvt_pk_bf16_f32 v{P+e//2}, v{S+e-1}, v{S+e}", "v", 1, 1))
                if i == 0:
                    self.sm0 = [x[0] for x in ops if "exp" in x[0]] + ["s_nop 0"] + [x[0] for x in ops if "cvt" in x[0]]
                else:
                    self.smlast = [x[0] for x in ops]
                continue
            for e in range(8):
                k = self.idx[(i, 2 * e)]
                self.place(f"v_exp_f32 v{S+e}, v{S+e}", "v", 2, k, k)
                if e & 1:
                    k = self.idx[(i, 2 * e + 1)]
                    self.place(f"v_cvt_pk_bf16_f32 v{P+e//2}, v{S+e-1}, v{S+e}", "v", 1, k, k)

    def lds_at(self, t, A, B):
        sl = t % 10
        if t < 16:
            return A[sl // 4], (sl % 4) * 16384
        return (B if t & 1 else A)[sl // 4], (sl & 2) * 16384

    def kread(self, t, f):
        reg, off = self.lds_at(t, vKA, vKB)
        kb, ks = f >> 2, f & 3
        return f"ds_read_b128 {r('a', aK+4*f, 4)}, v{reg} offset:{off + kb*8192 + ks*256}"

    def vread(self, t, f, h):
        reg, off = self.lds_at(t, vVA, vVB)
        u, e = f >> 1, f & 1
        return f"ds_read_b64_tr_b16 {r('a', aV+4*f+2*h, 2)}, v{reg} offset:{off + h*8192 + u*256 + e*8}"

    def place_reads(self):
        self.need = {}
        self.rdpos = {}
        lat = self.o["lat"]
        tasks = []
        for n in range(len(STEPS)):
            t = STEPS[n][1]
            if n > 0:
                s = first(n) - 2
                for f in range(8):
                    tasks.append((self.idx[(s + 1, f)], self.idx[(s, f)], self.kread(t, f), ("K", n)))
            s = first(n)
            for f in range(8):
                for h in range(2):
                    if n == 0:
                        self.v0reads.append(self.vread(t, f, h))
                    else:
                        tasks.append((self.idx[(s + 1, 8 + f)], self.idx[(s, 8 + f)], self.vread(t, f, h), ("V", n)))
        tasks.sort(key=lambda x: x[0])
        for use, lo, txt, tag in tasks:
            if tag == ("K", 1) and self.o["b1late"]:
                pass
            k = self.place(txt, "m", 1, lo, use - lat, "read", force=True)
            self.need.setdefault(use, []).append(txt)
            self.rdpos.setdefault(tag, []).append(k)

    def dma(self, t, which):
        u = unit_of(t)
        fl = self.o["ldflag"] if t < 16 else self.o["reflag"]
        if t < 6 and self.o.get("keepflag") is not None:
            fl = self.o["keepflag"]
        out = []
        if "k" in which:
            out += [f"buffer_load_dwordx4 v{vDK}, s[{sK}:{sK+3}], s{sUNIT+u} offen offset:{o} {fl} lds ; K{t}" for o in (0, 1024)]
        if "v" in which:
            out += [f"buffer_load_dwordx4 v{vDV}, s[{sV}:{sV+3}], s{sUNIT+u} offen offset:{o} {fl} lds ; V{t}" for o in (2048, 3072)]
        return out

    def m0(self, t):
        return f"s_add_u32 m0, s{sW4K}, {(t % 10) * 16384}"

    def qload(self, job, j):
        return [f"buffer_load_dwordx4 {Qreg(job, j, ks)}, v{vQO}, s[{sQ}:{sQ+3}], s{sROW + job*NT1 + j} offen offset:{ks*64} {self.o['qflag']} ; Q{job}_{j}"
                for ks in range(4)]

    def scale_v(self, j):
        out = []
        for k in range(16):
            q = vQ1 + 16 * j + k
            a, b = vT + 8 + 2 * (k & 1), vT + 8 + 2 * (k & 1) + 1
            out += [f"v_lshlrev_b32 v{a}, 16, v{q}", f"v_and_b32 v{b}, s{sMASK}, v{q}",
                    f"v_mul_f32 v{a}, s{sC}, v{a}", f"v_mul_f32 v{b}, s{sC}, v{b}",
                    f"v_cvt_pk_bf16_f32 v{q}, v{a}, v{b}"]
        return out

    def scale_a(self, j):
        out = []
        for k in range(16):
            q = aQ2 + 16 * j + k
            a, b = vT, vT + 1
            out += [f"v_accvgpr_read_b32 v{b}, a{q}", f"v_lshlrev_b32 v{a}, 16, v{b}", f"v_and_b32 v{b}, s{sMASK}, v{b}",
                    f"v_mul_f32 v{a}, s{sC}, v{a}", f"v_mul_f32 v{b}, s{sC}, v{b}",
                    f"v_cvt_pk_bf16_f32 v{a}, v{a}, v{b}", f"v_accvgpr_write_b32 a{q}, v{a}"]
        return [(x, "v", 1, 0) for x in out]

    def lsum_ops(self, j):
        R = vR + j
        t = vT + 2
        return [(f"v_accvgpr_read_b32 v{R}, a{aL+4*j}", "v", 1, 0),
                (f"v_subrev_u32 v{t}, s{sLO}, v{R}", "v", 1, 0),
                (f"v_cmp_lt_u32 vcc, s{sRNG}, v{t}", "v", 1, 0),
                (f"v_rcp_f32 v{R}, v{R}", "v", 2, 0),
                (f"s_or_b64 s[{sFLAG}:{sFLAG+1}], s[{sFLAG}:{sFLAG+1}], vcc", "s", 0, 1)]

    def drain_ops(self, job, j, us=range(4)):
        cls, ob = Obase(job, j)
        R = vR + j
        ops = []
        for u in us:
            if cls == "v":
                b = ob + 8 * u
            else:
                b = vT + 8
                for k in (4, 5, 6, 7, 0, 1, 2, 3):
                    ops.append((f"v_accvgpr_read_b32 v{b+k}, a{ob+8*u+k}", "v", 1, 0))
            for k in range(8):
                ops.append((f"v_mul_f32 v{b+k}, v{R}, v{b+k}", "v", 1, 0))
            for k in range(4):
                ops.append((f"v_cvt_pk_bf16_f32 v{b+k}, v{b+2*k}, v{b+2*k+1}", "v", 1, 0))
            ops.append((f"buffer_store_dwordx4 {r('v', b, 4)}, v{vQO}, s[{sO}:{sO+3}], s{sROW + job*NT1 + j} offen offset:{u*64} {self.o['stflag'] if job == 0 else self.o.get('stflag2', self.o['stflag'])} ; O{job}_{j}", "m", 2, 1))
        return ops

    def barrier_gap(self, t):
        return self.at(first(t) - 3, 16)

    def schedule(self):
        o = self.o
        self.v0reads = []
        make_steps(o["m2"])
        self.build_gaps()
        G = self.gaps
        self.bars = {}
        for t in range(1, 16):
            k = self.barrier_gap(t)
            self.bars[t] = k
            if t == 1 and o["b1late"]:
                continue
            G[k].s += [f"@VMWAIT {o['b1'] if t == 1 else 'V%d' % t}", "s_barrier"]
            G[k].locked = True
        self.ebar = {}
        for t in range(17, 29, 2):
            k = self.idx[(first(t + 1) - 1, 16)]
            self.ebar[t] = k
            G[k].s += [f"@VMWAIT V{t+4}" if t >= 23 else "s_nop 0", "s_barrier"]
            G[k].locked = True
        if o["b1"] == "K1":
            k = self.idx[(first(1) - 1, 16)]
            G[k].s += ["@VMWAIT V1", "s_barrier"]
            G[k].locked = True
        self.place_softmax()
        self.place_reads()
        def grp(names):
            out = []
            for nm in names:
                if nm[0] == "Q":
                    out += self.qload(0, int(nm[1:]))
                else:
                    out += [self.m0(int(nm[1:])), "s_nop 0"] + self.dma(int(nm[1:]), {"K": "k", "V": "v", "U": "kv"}[nm[0]])
            return out
        st = [x.split() for x in o["start"].split("|")]
        self.init_groups = grp(st[0])
        G[self.idx[(-1, 0)]].pre += (["@VMWAIT Q0_0"] + self.ss(5) + grp(st[1]) + self.scale_v(0) + ["@VMWAIT K0", "s_barrier"] + self.ss(6) +
                                     [self.kread(0, f) for f in range(8)] + ["s_waitcnt lgkmcnt(0)"])
        G[self.idx[(0, 0)]].pre += ["@VMWAIT Q0_1"] + self.ss(7) + grp(st[2]) + self.scale_v(1) + ["s_nop 1"]
        G[self.idx[(1, 0)]].pre += (self.sm0 + ["@VMWAIT V0", "s_barrier"] + self.ss(8) + self.v0reads +
                                    ["@VMWAIT Q0_2"] + self.ss(9) + grp(st[3]) + self.scale_v(2) + ["s_waitcnt lgkmcnt(0)"])
        for j in range(3, NT1):
            G[self.idx[(j - 1, 0)]].pre += [f"@VMWAIT Q0_{j}"] + self.ss(7 + j) + grp(st[j + 1]) + self.scale_v(j) + ["s_nop 1"]
        if o["b1late"]:
            G[self.idx[(NT1 - 2, 0)]].pre += ["@VMWAIT K1", "s_barrier"] + self.ss(13)
        self.insert_lgkm_waits()
        k = 0
        order = []
        for ent in o["sched"].split():
            p = ent.split(":")
            sl, gname = float(p[0]), p[1]
            sp = int(p[2]) if len(p) > 2 else o["space"]
            lo = max(k + 1, self.at(int(sl), int(round((sl - int(sl)) * 17))))
            t = int(gname[1:])
            if gname[0] == "q":
                ops = [(x, "m", 2, sp) for x in self.qload(1, t)]
                ops[0] = ops[0][:3] + (0,)
            else:
                if t >= 26:
                    lo = max(lo, self.ebar[(t - 10) | 1] + 1)
                elif t >= 10:
                    lo = max(lo, self.bars[t - 9] + 1)
                ops = [(self.m0(t), "s", 0, 0)] + [(x, "m", 2, sp) for x in self.dma(t, "kv")]
                ops[1] = ops[1][:3] + (1,)
            k = self.stream(ops, lo, what=gname)
            order.append((gname, k))
        self.order = order
        q2bar = {}
        for n, (gname, kk) in enumerate(order):
            if gname[0] == "q":
                q2bar[int(gname[1:])] = self.place(f"@VMWAIT Q1_{gname[1:]}", "s", 0, kk + int(o["qdelay"] * 17))
        for gname, kk in order:
            if gname[0] == "U":
                t = int(gname[1:])
                assert kk < (self.bars[t] if t < 16 else self.ebar[(t | 1) - 4]), (gname, "issued after its barrier")
        for tag, regs in (("K", vKA), ("V", vVA)):
            self.stream([(f"v_add_u32 v{x}, s{sSWAP}, v{x}", "v", 1, 0) for x in regs], max(self.rdpos[(tag, 15)]), min(self.rdpos[(tag, 16)]) - 1, "swap")
        k = 0
        for n in range(NT2):
            lo = max(k, q2bar[n] + 1)
            hi = self.idx[(J2 + n - 1, 0)] - 2
            k = self.stream(self.scale_a(n), lo, hi, f"scale{n}")
        self.scale_end = k
        lend = {}
        k = 0
        for j in range(NT1):
            fin = self.idx[(first(15) + j + 1, 16)]
            hi = self.idx[(first(16) + j + 1, 16)] - 2 if j < NT2 else None
            k = self.stream(self.lsum_ops(j)[:1], max(k, fin + 5), hi, "lsum")
            lend[j] = k
        import copy
        lo_x, hi_x = self.idx[(J2 - 4, 0)], self.idx[(o["d1end"], 0)]
        cand = [x for x in range(lo_x, hi_x) if not G[x].locked]
        nx = 0
        while True:
            save = copy.deepcopy(self.gaps)
            G = self.gaps
            for q in range(nx):
                G[cand[(q * len(cand)) // nx]].extra = 1
            k = 0
            try:
                for j in range(NT1):
                    hi = self.idx[(first_item(1, 3) + 1, 8)] - 2 if j == 0 else hi_x
                    k = self.stream(self.lsum_ops(j)[1:], max(k, lend[j]), hi, f"lrest{j}")
                    k = self.stream(self.drain_ops(0, j), k, hi, f"drain{j}")
                break
            except Exception as e:
                if not str(e).startswith("deadline"):
                    raise
                self.gaps = save
                nx += 4
        for gp in G:
            gp.extra = 0
        self.nx = nx
        self.drain1_end = k
        lastg = self.idx[(NITEM, 8)]
        rest = []
        kcur = self.at(NITEM - 1, 0)
        for x in self.smlast:
            un, sep = (2, 0) if "exp" in x else (1, 1)
            if not rest:
                kt = kcur + sep
                while kt < lastg and G[kt].free_v() < un:
                    kt += 1
                if kt < lastg:
                    self.place(x, "v", un, kt, kt)
                    kcur = kt
                    continue
            rest.append(x)
        G[lastg].pre += [x for x in rest if "exp" in x] + ["s_nop 0"] + [x for x in rest if "cvt" in x] + ["s_nop 1"]
        txt = lambda ops: [x[0] for x in ops]
        def blockat(i, g):
            k = self.at(min(i, NITEM + 1), g if i <= NITEM else 0)
            lst = G[k].pre if G[k].mfma else G[k].v
            if i >= NITEM - 1:
                lst.append("s_nop 7")
            return lst
        for j in range(3):
            li = last_item(1, j)
            code = txt(self.lsum_ops(j)) + txt(self.drain_ops(1, j))
            if li == NITEM - 1:
                G[-1].v += ["s_nop 7"] + code
            else:
                blockat(li + 2, o["blockgap"]).extend(code)
        li = last_item(1, 3)
        ob = Obase(1, 3)[1]
        R = vR + 3
        t = vT + 1
        def two(name, lo_code, hi_code):
            return ([f"s_cmp_lg_u32 s{sSWAP}, 0", f"s_cbranch_scc1 L_{name}_hi"] + lo_code + [f"s_branch L_{name}_end", f"L_{name}_hi:"] +
                    ["~" + x for x in hi_code] + [f"L_{name}_end:"])
        send = lambda b: [f"ds_write_b128 v{vXW}, {r('v', b+4*q, 4)} offset:{q*1024}" for q in range(4)]
        recv = lambda b: [f"ds_read_b128 {r('v', b+4*q, 4)}, v{vXR} offset:{q*1024}" for q in range(4)]
        def fin(keep, got, us):
            return [f"v_add_f32 v{keep+q}, v{keep+q}, v{got+q}" for q in range(16)] + txt(self.drain_ops(1, 3, us))
        blockat(li + 2, o["blockgap"]).extend([f"ds_write_b128 v{vXW}, {r('a', aL+12, 4)} offset:4096"] + two("snd", send(ob + 16), send(ob)))
        blockat(li + 3, o["blockgap"]).extend(["@LGKM ds_write", "s_barrier", f"ds_read_b32 v{t}, v{vXR} offset:4096"] + two("rcv", recv(ob + 16), recv(ob)))
        lo_ = txt(self.lsum_ops(3))
        blockat(li + 4, o["blockgap"]).extend(["@LGKM rcv", lo_[0], f"v_add_f32 v{R}, v{R}, v{t}"] + lo_[1:] + two("fin", fin(ob, ob + 16, (0, 1)), fin(ob + 16, ob, (2, 3))))
        self.insert_lgkm_waits(final=True)

    def insert_lgkm_waits(self, final=False):
        G = self.gaps
        issued = []
        done = 0
        for k, gp in enumerate(G):
            gp.s = [x for x in gp.s if not x.startswith("s_waitcnt lgkmcnt")]
            lists = [gp.pre] if gp.mfma else [gp.pre, gp.v]
            for lst in lists:
                for n, x in enumerate(lst):
                    if x.startswith("ds_"):
                        issued.append(x)
                    elif x.startswith("s_waitcnt lgkmcnt(0)"):
                        done = len(issued)
                    elif x.startswith("@LGKM"):
                        key = "ds_write" if "write" in x else f", v{vXR} "
                        pos = max(q for q, y in enumerate(issued) if key in y)
                        lst[n] = f"s_waitcnt lgkmcnt({min(15, len(issued) - 1 - pos)}) ; xchg"
                        done = max(done, pos + 1)
            nd = self.need.get(k + 1, [])
            if nd:
                nxt = [x for x in G[k + 1].pre if x.startswith("ds_")]
                pos = max(len(issued) - 1 - issued[::-1].index(x) for x in nd)
                if pos >= done:
                    n = min(15, len(issued) - 1 - pos)
                    gp.s.insert(0, f"s_waitcnt lgkmcnt({n})")
                    done = len(issued) - n
            for x in gp.m:
                if x.startswith("ds_"):
                    issued.append(x)

    def prologue(self):
        o = self.o
        L = []
        a = L.append
        if o["stamps"]:
            a("s_memrealtime s[90:91]"); a("s_memtime s[92:93]")
        a("s_cmp_ge_u32 s2, 256")
        a("s_cbranch_scc1 L_exit")
        a("s_load_dwordx8 s[4:11], s[0:1], 0")
        if o["stamps"]:
            a("s_load_dwordx4 s[12:15], s[0:1], 32")
        a(f"v_lshrrev_b32 v10, 6, v0              ; wave")
        a(f"v_and_b32 v11, 63, v0                 ; lane")
        a(f"v_readfirstlane_b32 s{sTMP}, v10")
        a(f"v_and_b32 v12, 15, v0                 ; i")
        a(f"v_lshrrev_b32 v13, 4, v11             ; g")
        a(f"v_and_b32 v14, 3, v0                  ; lane&3")
        a(f"v_bfe_u32 v15, v0, 2, 2               ; (lane>>2)&3")
        a(f"s_lshl_b32 s{sW4K}, s{sTMP}, 12")
        a(f"v_lshlrev_b32 v{vQO}, 8, v12")
        a(f"v_lshl_add_u32 v{vQO}, v13, 4, v{vQO}")
        a(f"v_lshl_add_u32 v{vQO}, v10, 12, v{vQO}")
        a(f"v_lshlrev_b32 v16, 1, v10")
        a(f"v_and_b32 v16, 2, v16")
        a(f"v_xor_b32 v16, v16, v15")
        a(f"v_lshlrev_b32 v17, 11, v10")
        a(f"v_lshl_add_u32 v17, v13, 6, v17       ; w*2048 + g*64")
        a(f"v_lshl_add_u32 v{vDK}, v14, 8, v17")
        a(f"v_lshl_add_u32 v{vDK}, v16, 4, v{vDK}")
        a(f"v_lshl_add_u32 v{vDV}, v15, 8, v17")
        a(f"v_lshl_add_u32 v{vDV}, v14, 4, v{vDV}")
        a(f"s_mul_i32 s{sTMP}, s2, 155648")
        a(f"s_lshl_b32 s3, s2, 17")
        a(f"s_mov_b32 s{sK+2}, 131072")
        a(f"s_mov_b32 s{sK+3}, 0x20000")
        a(f"s_mov_b32 s{sQ+2}, 155648")
        a(f"s_mov_b32 s{sQ+3}, 0x20000")
        a(f"s_mov_b32 s{sV+2}, {131072+2048}")
        a(f"s_mov_b32 s{sV+3}, 0x20000")
        a(f"s_mov_b32 s{sO+2}, 155648")
        a(f"s_mov_b32 s{sO+3}, 0x20000")
        for u in range(16):
            a(f"s_mov_b32 s{sUNIT+u}, {u*8192}")
        for j in range(NT1 + NT2):
            a(f"s_mov_b32 s{sROW+j}, {j*16384}")
        if o["prefetch"]:
            a("s_getpc_b64 s[72:73]")
            a("L_pc:")
            if o["touch"]:
                a("s_add_u32 s72, s72, L_main-L_pc")
                a("s_addc_u32 s73, s73, 0")
            a("s_lshr_b32 s74, s2, 3")
            a("s_and_b32 s74, s74, 31")
            a("s_lshl_b32 s74, s74, 11")
            a("v_lshlrev_b32 v18, 9, v10")
            a("v_lshl_add_u32 v18, v14, 7, v18")
            a("v_add_u32 v18, s74, v18")
            a("v_min_u32 v18, L_codeend-%s-4, v18" % ("L_main" if o["touch"] else "L_pc"))
            a(f"global_load_dword v{vT+23}, v18, s[72:73] ; PF")
        a("s_waitcnt lgkmcnt(0)")
        L += self.ss(0)
        a(f"s_add_u32 s{sK}, s6, s3")
        a(f"s_addc_u32 s{sK+1}, s7, 0")
        a(f"s_add_u32 s{sQ}, s4, s{sTMP}")
        a(f"s_addc_u32 s{sQ+1}, s5, 0")
        a(f"s_add_u32 s{sV}, s8, s3")
        a(f"s_addc_u32 s{sV+1}, s9, 0")
        a(f"s_sub_u32 s{sV}, s{sV}, 2048")
        a(f"s_subb_u32 s{sV+1}, s{sV+1}, 0")
        L += self.init_groups + self.ss(1)
        a(f"s_add_u32 s{sO}, s10, s{sTMP}")
        a(f"s_addc_u32 s{sO+1}, s11, 0")
        a(f"v_lshrrev_b32 v16, 1, v15")
        a(f"v_and_b32 v17, 1, v15")
        a(f"v_lshlrev_b32 v18, 12, v16")
        a(f"v_lshl_add_u32 v18, v17, 10, v18")
        a(f"v_and_b32 v16, 2, v15")
        a(f"v_xor_b32 v16, v16, v13")
        a(f"v_lshl_add_u32 v18, v16, 6, v18")
        a(f"v_lshl_add_u32 v{vKA[0]}, v14, 4, v18")
        a(f"v_add_u32 v{vKA[1]}, 0x10000, v{vKA[0]}")
        a(f"v_add_u32 v{vKA[2]}, 0x20000, v{vKA[0]}")
        a(f"v_lshrrev_b32 v16, 1, v13")
        a(f"v_and_b32 v17, 1, v13")
        a(f"v_lshlrev_b32 v18, 12, v16")
        a(f"v_lshl_add_u32 v18, v17, 10, v18")
        a(f"v_lshl_add_u32 v18, v12, 4, v18      ; (i>>2)*64+(i&3)*16 = i*16")
        a(f"v_add_u32 v{vVA[0]}, 2048, v18")
        a(f"v_add_u32 v{vVA[1]}, 0x10000, v{vVA[0]}")
        a(f"v_add_u32 v{vVA[2]}, 0x20000, v{vVA[0]}")
        a(f"s_and_b32 s{sSWAP}, s{sW4K}, 8192")
        a(f"s_sub_u32 s{sROW+9}, s{sROW+9}, s{sSWAP}")
        a(f"s_lshl_b32 s{sSWAP}, s{sSWAP}, 1")
        a(f"s_sub_u32 s3, 16384, s{sSWAP}")
        for x, y in zip(vKB + vVB, vKA + vVA):
            a(f"v_add_u32 v{x}, s3, v{y}")
        a(f"v_mul_u32_u24 v16, 5120, v10")
        a(f"v_lshl_add_u32 v16, v11, 4, v16")
        a(f"v_add_u32 v{vXW}, {XBASE}, v16")
        a(f"v_xor_b32 v16, 2, v10")
        a(f"v_mul_u32_u24 v16, 5120, v16")
        a(f"v_lshl_add_u32 v16, v11, 4, v16")
        a(f"v_add_u32 v{vXR}, {XBASE}, v16")
        a(f"v_cmp_eq_u32 vcc, 0, v14")
        a(f"v_mov_b32 v17, 0x3f803f80")
        a(f"s_nop 0")
        a(f"v_cndmask_b32 v16, 0, v17, vcc")
        for k in range(4):
            a(f"v_accvgpr_write_b32 a{aONE+k}, v16")
        a(f"s_mov_b32 s{sC}, {C_SCALE:#x}")
        a(f"s_mov_b32 s{sMASK}, 0xffff0000")
        a(f"s_mov_b32 s{sLO}, {L_LO:#x}")
        a(f"s_mov_b32 s{sRNG}, {L_HI-L_LO:#x}")
        a(f"s_mov_b64 s[{sFLAG}:{sFLAG+1}], 0")
        return L

    def ss(self, n):
        return ["s_memtime s[74:75]", "s_waitcnt lgkmcnt(0)", f"v_writelane_b32 v0, s74, {n}"] if self.o.get("startstamps") else []

    def linear(self):
        L = self.prologue() + self.ss(2) + (["@VMWAIT PF"] if self.o["prefetch"] else []) + self.ss(3) + ["@MAIN"] + self.ss(4)
        st = self.o["stamps"]
        tl = {self.idx[(first(t), 0)]: t for t in range(32)} if self.o.get("timeline") else {}
        tl_end = self.idx[(NITEM - 1, 8)]
        for k, gp in enumerate(self.gaps):
            if k in tl:
                if tl[k] > 0:
                    L += ["s_waitcnt lgkmcnt(0)", f"v_writelane_b32 v0, s74, {tl[k]-1}", f"v_writelane_b32 v0, s72, {tl[k]-1+32}"]
                L += ["s_memtime s[74:75]", "s_memrealtime s[72:73]"] if tl[k] > 0 else []
                if tl[k] == 0:
                    gp.pre = gp.pre + ["s_memtime s[74:75]", "s_memrealtime s[72:73]"]
            if tl and k == tl_end:
                L += ["s_waitcnt lgkmcnt(0)", f"v_writelane_b32 v0, s74, 31", f"v_writelane_b32 v0, s72, 63"]
            if st and k == self.idx[(4, 0)]:
                L += gp.pre + ["s_memrealtime s[84:85]", "s_memtime s[86:87]"]
            elif st and k == self.idx[(J2, 0)]:
                L += gp.pre + ["s_memrealtime s[82:83]"]
            elif st and gp.mfma is None:
                L += gp.pre + ["s_memrealtime s[88:89]", "s_memtime s[80:81]"]
            else:
                L += gp.pre
            if gp.mfma:
                if gp.g == 0 or (gp.slot >= NITEM - 1 and gp.g == 8):
                    L.append(f"; ---- slot {gp.slot}")
                L.append(gp.mfma)
            L += gp.s + gp.m + gp.v
        out = []
        vm = []
        done = 0
        self.maxout = 0
        for x in L:
            if x.startswith("~"):
                out.append(x[1:])
                continue
            if x.startswith("@VMWAIT"):
                tag = x.split()[1]
                pos = max(n for n, y in enumerate(vm) if y == tag)
                n = len(vm) - 1 - pos
                assert n <= 63, (tag, n)
                if pos >= done:
                    done = pos + 1
                out.append(f"s_waitcnt vmcnt({n})")
                continue
            if x.startswith(("buffer_", "global_")) and not x.startswith("buffer_wbl2"):
                vm.append(x.split(";")[-1].strip())
                self.maxout = max(self.maxout, len(vm) - done)
            out.append(x)
        return out

    def slow_path(self):
        L = []
        a = L.append
        M = "v_mfma_f32_16x16x32_bf16"
        a("L_slow:")
        a("s_waitcnt vmcnt(0)")
        a("v_mbcnt_lo_u32_b32 v11, -1, 0")
        a("v_mbcnt_hi_u32_b32 v11, -1, v11")
        a("v_and_b32 v12, 15, v11")
        a("v_lshrrev_b32 v13, 4, v11")
        a("v_lshlrev_b32 v2, 8, v12")
        a("v_lshl_add_u32 v2, v13, 4, v2           ; K offset")
        a("v_lshlrev_b32 v3, 1, v12")
        a("v_lshl_add_u32 v3, v13, 10, v3")
        a("v_add_u32 v3, 2048, v3")
        a("v_lshlrev_b32 v4, 8, v12")
        a("v_lshl_add_u32 v4, v13, 3, v4")
        a(f"v_add_u32 v4, s{sW4K}, v4")
        a("s_mov_b32 s76, 0")
        a("L_slow_sub:")
        for ks in range(4):
            a(f"buffer_load_dwordx4 v[{64+4*ks}:{67+4*ks}], v{vQO}, s[{sQ}:{sQ+3}], s76 offen offset:{ks*64}")
        a("v_mov_b32 v5, 0xff800000")
        a("s_mov_b32 s77, 0")
        a("L_slow_max:")
        for pas in range(2):
            if pas == 1:
                a("v_mov_b32 v6, v5")
                a("s_nop 1")
                a("v_permlane32_swap_b32 v5, v6")
                a("s_nop 1")
                a("v_max_f32 v5, v5, v6")
                a("v_mov_b32 v6, v5")
                a("s_nop 1")
                a("v_permlane16_swap_b32 v5, v6")
                a("s_nop 1")
                a("v_max_f32 v5, v5, v6")
                a(f"v_mul_f32 v5, s{sC}, v5")
                a("v_mov_b32 v7, 0")
                for k in range(32):
                    a(f"v_mov_b32 v{96+k}, 0")
                a("s_mov_b32 s77, 0")
                a("L_slow_pv:")
            a("s_add_u32 s78, s77, 4096")
            for f in range(8):
                a(f"buffer_load_dwordx4 v[{128+4*f}:{131+4*f}], v2, s[{sK}:{sK+3}], s{77 + (f >> 2)} offen offset:{(f & 3)*64}")
            if pas == 1:
                for f in range(8):
                    for jj in range(8):
                        a(f"buffer_load_ushort v{160+8*f+jj}, v3, s[{sV}:{sV+3}], s{77 + (jj >> 2)} offen offset:{(jj & 3)*256 + f*32}")
                    if f == 3:
                        a("s_waitcnt vmcnt(16)")
            a("s_waitcnt vmcnt(0)")
            for f in range(8):
                kb, ks = f >> 2, f & 3
                d = f"v[{16+4*kb}:{19+4*kb}]"
                a(f"{M} {d}, v[{128+4*f}:{131+4*f}], v[{64+4*ks}:{67+4*ks}], {'0' if ks == 0 else d}")
            a("s_nop 7")
            a("s_nop 1")
            if pas == 0:
                for k in range(0, 8, 2):
                    a(f"v_max3_f32 v5, v5, v{16+k}, v{17+k}")
                a("s_add_u32 s77, s77, 8192")
                a("s_cmp_lt_u32 s77, 131072")
                a("s_cbranch_scc1 L_slow_max")
            else:
                for k in range(8):
                    a(f"v_fma_f32 v{16+k}, v{16+k}, s{sC}, -v5")
                for k in range(8):
                    a(f"v_exp_f32 v{16+k}, v{16+k}")
                a("s_nop 0")
                for k in range(8):
                    a(f"v_add_f32 v7, v7, v{16+k}")
                for k in range(4):
                    a(f"v_cvt_pk_bf16_f32 v{32+k}, v{16+2*k}, v{17+2*k}")
                for k in range(32):
                    a(f"v_lshl_or_b32 v{224+k}, v{161+2*k}, 16, v{160+2*k}")
                a("s_nop 1")
                for f in range(8):
                    d = f"v[{96+4*f}:{99+4*f}]"
                    a(f"{M} {d}, v[{224+4*f}:{227+4*f}], v[32:35], {d}")
                a("s_add_u32 s77, s77, 8192")
                a("s_cmp_lt_u32 s77, 131072")
                a("s_cbranch_scc1 L_slow_pv")
        a("v_mov_b32 v6, v7")
        a("s_nop 1")
        a("v_permlane32_swap_b32 v7, v6")
        a("s_nop 1")
        a("v_add_f32 v7, v7, v6")
        a("v_mov_b32 v6, v7")
        a("s_nop 1")
        a("v_permlane16_swap_b32 v7, v6")
        a("s_nop 1")
        a("v_add_f32 v7, v7, v6")
        a("v_rcp_f32 v7, v7")
        a("s_nop 7")
        for k in range(32):
            a(f"v_mul_f32 v{96+k}, v7, v{96+k}")
        for k in range(16):
            a(f"v_cvt_pk_bf16_f32 v{128+k}, v{96+2*k}, v{97+2*k}")
        for f in range(8):
            a(f"buffer_store_dwordx2 v[{128+2*f}:{129+2*f}], v4, s[{sO}:{sO+3}], s76 offen offset:{f*32}")
        a("s_waitcnt vmcnt(0)")
        a("s_add_u32 s76, s76, 16384")
        a(f"s_cmp_lt_u32 s76, {16384*(NT1+NT2)}")
        a("s_cbranch_scc1 L_slow_sub")
        return L

    def stamp_out(self):
        if self.o["stamps"] == "dbg":
            L = ["s_waitcnt vmcnt(0) lgkmcnt(0)", "s_memrealtime s[94:95]", "s_memtime s[96:97]", "s_waitcnt lgkmcnt(0)",
                 "s_mov_b32 s76, s12", "s_mov_b32 s77, s13", "s_mov_b32 s78, 256", "s_mov_b32 s79, 0x20000",
                 "v_and_b32 v2, 63, v0", "v_lshlrev_b32 v1, 2, v2", "v_mov_b32 v4, 0"]
            for n, sr in enumerate([90, 84, 82, 88, 94]):
                L += [f"s_not_b32 s3, s{sr}", f"v_writelane_b32 v4, s3, {2*n}", f"v_writelane_b32 v4, s{sr}, {2*n+1}"]
            L += ["s_sub_u32 s3, s80, s86", "v_writelane_b32 v4, s3, 10", "s_not_b32 s3, s3", "v_writelane_b32 v4, s3, 12", "s_sub_u32 s3, s96, s92", "v_writelane_b32 v4, s3, 11"]
            L += ["v_cmp_gt_u32 vcc, 16, v2", "s_and_saveexec_b64 s[98:99], vcc", "buffer_atomic_umax v4, v1, s[76:79], 0 offen"]
            return L
        L = ["s_waitcnt vmcnt(0) lgkmcnt(0)", "s_memrealtime s[94:95]", "s_memtime s[96:97]", "s_waitcnt lgkmcnt(0)",
             "v_mov_b32 v30, v0", "v_mbcnt_lo_u32_b32 v0, -1, 0", "v_mbcnt_hi_u32_b32 v0, -1, v0", f"s_lshr_b32 s3, s{sW4K}, 6", "v_add_u32 v0, s3, v0",
             "s_mov_b32 s76, s14", "s_mov_b32 s77, s15", "s_mov_b32 s78, 0x1000000", "s_mov_b32 s79, 0x20000",
             "v_lshrrev_b32 v1, 6, v0", "v_lshlrev_b32 v1, 6, v1", "s_lshl_b32 s3, s2, 8", "v_add_u32 v1, s3, v1"]
        for n, s in enumerate([90, 91, 92, 93, 94, 95, 96, 97, 84, 85, 86, 82, 88, 89, 80, 81]):
            L.append(f"v_mov_b32 v{4+n}, s{s}")
        if self.o.get("timeline") or self.o.get("startstamps"):
            L += ["v_lshlrev_b32 v2, 2, v0", "s_lshl_b32 s3, s2, 10", "s_add_u32 s3, s3, 0x100000", "buffer_store_dword v30, v2, s[76:79], s3 offen"]
        L += ["v_and_b32 v2, 63, v0", "v_cmp_eq_u32 vcc, 0, v2", "s_and_saveexec_b64 s[98:99], vcc"]
        for n in range(4):
            L.append(f"buffer_store_dwordx4 v[{4+4*n}:{7+4*n}], v1, s[76:79], 0 offen offset:{16*n}")
        return L

    def text(self):
        self.schedule()
        body = self.linear()
        verify([x for x in body if x != "@MAIN"])
        tail = [f"s_cmp_lg_u64 s[{sFLAG}:{sFLAG+1}], 0", "s_cbranch_scc1 L_slow"] if self.o["slow"] else []
        if self.o.get("forceslow"):
            tail = ["s_branch L_slow"]
        tail += ["L_done:"]
        if self.o["stamps"]:
            tail += self.stamp_out()
        tail += ["L_exit:", "s_endpgm", "L_codeend:"]
        cut = body.index("@MAIN")
        if self.o["touch"]:
            main, chain = add_markers(body[cut + 1:] + tail)
            body = body[:cut] + chain + ["s_branch L_main", ".p2align 12", "L_main:"] + main
            tail = []
        else:
            body = body[:cut] + body[cut + 1:]
        if self.o["slow"]:
            sp = self.slow_path()
            verify(sp)
            tail += sp + ["s_branch L_done"]
        hdr = open("header.txt").read()
        fmt = lambda x: (x if x.endswith(":") or x.startswith((";", ".")) else "    " + x)
        return (hdr + f""".amdgcn_target "amdgcn-amd-amdhsa--gfx950"
.text
.globl {KN}
.p2align 8
.type {KN},@function
{KN}:
""" + "\n".join(fmt(x) for x in body + tail) + f"""
.section .rodata,"a"
.p2align 6
.amdhsa_kernel {KN}
  .amdhsa_next_free_vgpr 512
  .amdhsa_next_free_sgpr 102
  .amdhsa_accum_offset 256
  .amdhsa_group_segment_fixed_size 0
  .amdhsa_kernarg_size 48
  .amdhsa_user_sgpr_count 2
  .amdhsa_user_sgpr_kernarg_segment_ptr 1
  .amdhsa_system_sgpr_workgroup_id_x 1
.end_amdhsa_kernel
""")


def isize(x):
    x = x.split(";")[0].strip()
    if not x or x.endswith(":") or x.startswith("."):
        return 0
    op, _, rest = x.partition(" ")
    if op.startswith(("v_mfma", "ds_", "buffer_", "global_", "v_accvgpr", "v_cvt_pk", "v_fma", "v_lshl_add", "v_lshl_or", "v_bfe", "v_max3",
                      "v_writelane", "v_mbcnt", "v_pk_", "s_load", "s_mem", "v_add3", "v_mul_lo", "v_perm_")):
        return 8
    if "_dpp" in op or "row_" in rest or "quad_perm" in rest:
        return 8
    if op.startswith(("s_waitcnt", "s_nop", "s_barrier", "s_cbranch", "s_branch", "s_endpgm", "s_setprio", "s_sleep")):
        return 4
    for t in rest.split(","):
        t = t.strip().split()[0] if t.strip() else ""
        if re.fullmatch(r"-?(0x[0-9a-fA-F]+|\d+)", t):
            v = int(t, 0)
            if not -16 <= v <= 64:
                return 8
        elif t.startswith("L_"):
            return 8
    return 4


def add_markers(L, nw=4):
    out, addr, page, marks = [], 0, 1, []
    n = 0
    while n < len(L):
        x = L[n]
        if addr >= page * 4096:
            best, a2 = None, addr
            for m in range(n, len(L)):
                if a2 + 4 > page * 4096 + 64:
                    break
                prev = L[m - 1] if m > n else (out[-1] if out else "")
                if prev.startswith("v_mfma") and not L[m].startswith(("s_", "@")) and isize(L[m]):
                    best = m
                    break
                a2 += isize(L[m])
            if best is None:
                best = n
            for m in range(n, best):
                out.append(L[m]); addr += isize(L[m])
            marks.append(len(out))
            out.append(None); addr += 4
            n = best
            page += 1
            continue
        out.append(x); addr += isize(x); n += 1
    per = (len(marks) + nw - 1) // nw
    res = []
    mi = {p: k for k, p in enumerate(marks)}
    for k, x in enumerate(out):
        if x is None:
            m = mi[k]
            last = (m + 1) % per == 0 or m + 1 == len(marks)
            res += [f"L_m{m}:", f"s_cbranch_execz {'L_back' if last else 'L_m%d' % (m + 1)}"]
        else:
            res.append(x)
    chain = ["s_mov_b64 exec, 0"]
    for w in range(nw):
        if w * per < len(marks):
            chain += [f"s_cmp_eq_u32 s{sW4K}, {w * 4096}", f"s_cbranch_scc1 L_m{w * per}"]
    chain += ["L_back:", "s_mov_b64 exec, -1"]
    return res, chain


def regs(tok):
    tok = tok.strip().lstrip("-")
    m = re.fullmatch(r"([va])(\d+)", tok)
    if m:
        return {(m.group(1), int(m.group(2)))}
    m = re.fullmatch(r"([va])\[(\d+):(\d+)\]", tok)
    if m:
        return {(m.group(1), k) for k in range(int(m.group(2)), int(m.group(3)) + 1)}
    return set()


def parse(x):
    x = x.split(";")[0].strip()
    if not x or x.endswith(":"):
        return None
    op, _, rest = x.partition(" ")
    ops = [t.strip() for t in rest.split(",")]
    last = ops[-1].split()
    if last:
        ops[-1] = last[0]
    d = dict(op=op, w=set(), rd=set(), kind="s", c=set(), ws=1, m0w=False)
    if op == "s_nop":
        d["ws"] = int(ops[0]) + 1
    if op.startswith("s_") and ops and ops[0] == "m0":
        d["m0w"] = True
    if op.startswith("v_mfma"):
        d.update(kind="mfma", w=regs(ops[0]), rd=regs(ops[1]) | regs(ops[2]), c=regs(ops[3]))
    elif op.startswith("v_"):
        d["kind"] = "valu"
        if op.startswith("v_cmp") or op.startswith("v_readfirstlane"):
            d["rd"] = set().union(*[regs(t) for t in ops[1:]])
        elif op.startswith("v_permlane"):
            d["w"] = regs(ops[0]) | regs(ops[1]); d["rd"] = set(d["w"])
        else:
            d["w"] = regs(ops[0]); d["rd"] = set().union(*[regs(t) for t in ops[1:]])
        d["trans"] = op.startswith(("v_exp", "v_rcp"))
    elif op.startswith("ds_write"):
        d.update(kind="ds", rd=regs(ops[0]) | regs(ops[1]))
    elif op.startswith("ds_read"):
        d.update(kind="ds", w=regs(ops[0]), rd=regs(ops[1]))
    elif op.startswith("buffer_store"):
        d.update(kind="store", rd=regs(ops[0]) | regs(ops[1]), data=regs(ops[0]))
    elif op.startswith(("buffer_load", "global_load")):
        if " lds" in x:
            d.update(kind="dma", rd=regs(ops[0]))
        else:
            d.update(kind="load", w=regs(ops[0]), rd=regs(ops[1]))
    return d


def verify(L):
    ins = [(x, parse(x)) for x in L]
    ins = [(x, d) for x, d in ins if d]
    bad = 0
    for n, (x, d) in enumerate(ins):
        dist = 0
        for m in range(n - 1, max(-1, n - 14), -1):
            y, p = ins[m]
            need = 0
            if p["kind"] == "mfma":
                if d["kind"] == "mfma":
                    if p["w"] & d["rd"]:
                        need = 8
                    elif p["w"] & d["c"] and p["w"] != d["c"]:
                        need = 6
                    elif p["w"] & d["w"] and p["w"] != d["w"]:
                        need = 6
                elif p["w"] & (d["rd"] | d["w"]):
                    need = 8
                elif d["kind"] == "valu" and p["c"] & d["w"]:
                    need = 3
            elif p["kind"] == "valu":
                if d["kind"] == "mfma" and p["w"] & (d["rd"] | d["c"]):
                    need = 2
                elif d["kind"] == "valu" and p.get("trans") and not d.get("trans") and p["w"] & d["rd"]:
                    need = 1
                elif d["op"].startswith("v_permlane") and p["w"] & d["rd"]:
                    need = 2
                elif d["op"].startswith("v_readfirstlane") and p["w"] & d["rd"]:
                    need = 1
            elif p["kind"] == "store":
                if p["data"] & d["w"]:
                    need = 2
            elif p["m0w"] and d["kind"] == "dma":
                need = 1
            if dist < need:
                print(f"HAZARD need {need} have {dist}:\n   {y}\n   {x}", file=sys.stderr)
                bad += 1
            dist += p["ws"]
    assert bad == 0


if __name__ == "__main__":
    opt = {}
    out = sys.argv[1]
    for kv in sys.argv[2:]:
        k, v = kv.split("=", 1)
        try:
            v = eval(v)
        except Exception:
            pass
        opt[k] = v
    g = Gen(opt)
    t = g.text()
    open(out, "w").write(t)
    G = g.gaps
    print("   issue ends:", " ".join(f"{n}@{G[k].slot}" for n, k in g.order), file=sys.stderr)
    est = lambda a, b: sum(x.cycles() + 4 * len([y for y in x.pre if not y.startswith("~")]) for x in G[:-1] if a <= x.slot < b)
    print(f"{out}: max vm outstanding {g.maxout}, scale ends slot {G[g.scale_end].slot}, drain1 ends at slot {G[g.drain1_end].slot} (overflow {g.nx}), tail instrs {len(G[-1].v)}, "
          f"free units job1 {sum(x.free_v() for x in G if x.slot < J2)}, job2 {sum(max(0, x.free_v()) for x in G[:-1] if x.slot >= J2)}, items {NITEM}, est cycles job1(6..) {est(6, J2)} job2 {est(J2, 999)}", file=sys.stderr)
```

```python
import sys, re, struct, math

KN = "standalone__mha_softmax__near_ridge_kernel"

vTID = 0
vQO = 1
vDK, vDV = 2, 3
vKA = [4, 5, 6]
vVA = [7, 8, 9]
vKB = [43, 44, 45]
vVB = [46, 47, 56]
vXW, vXR = 57, 58
vDIAG = 0
XBASE = 2 * 16384
vR = 10
vS = 16
vP = 32
vT = 40
vO1 = 64
vQ1 = 160
aO1 = 0
aK = 96
aV = 128
aQ2 = 160
aL = 224
aONE = 248

sQ, sK, sV, sO = 16, 20, 24, 28
sW4K = 32
sTMP = 33
sC = 34
sMASK = 35
sLO, sRNG = 38, 39
sFLAG = 40
sSWAP = 42
sROW = 44
sUNIT = 56

C_SCALE = struct.unpack("<I", struct.pack("<f", math.log2(math.e) / math.sqrt(128.0)))[0]
L_LO = (127 - 40) << 23
L_HI = (127 + 60) << 23

NT1, NT2 = 6, 4
J2 = 16 * NT1
STEPS, ITEMS, FIRST = [], [], []
NITEM = 0


def make_steps(m):
    global NITEM
    st = [(0, t, list(range(NT1))) for t in range(16)]
    X = lambda t: [3] if t % 2 == 0 else []
    st += [(1, t, [0, 1, 2] + X(t)) for t in range(16, 32 - m)]
    st += [(1, t, ([0, 1] + X(t)) if t < 30 else (X(t) + [0, 1])) for t in range(32 - m, 32)]
    st += [(1, t, [2]) for t in range(32 - m, 32)]
    STEPS[:] = st
    ITEMS[:] = []
    FIRST[:] = []
    for n, (job, t, subs) in enumerate(st):
        FIRST.append(len(ITEMS))
        ITEMS.extend((job, t, j, n) for j in subs)
    NITEM = len(ITEMS)
    FIRST.append(NITEM)


def item(i):
    return ITEMS[i][:3]


def first(n):
    return FIRST[n]


def last_item(job, j):
    return max(i for i, x in enumerate(ITEMS) if x[0] == job and x[2] == j)


def first_item(job, j):
    return min(i for i, x in enumerate(ITEMS) if x[0] == job and x[2] == j)


def unit_of(t):
    return t if t < 16 else (t - 10 if t < 26 else t - 26)


def r(cls, lo, n=1):
    return f"{cls}{lo}" if n == 1 else f"{cls}[{lo}:{lo+n-1}]"


def Qreg(job, j, ks):
    return r("v", vQ1 + 16 * j + 4 * ks, 4) if job == 0 else r("a", aQ2 + 16 * j + 4 * ks, 4)


def Obase(job, j):
    if job == 0:
        return ("v", vO1 + 32 * j) if j < 3 else ("a", aO1 + 32 * (j - 3))
    return ("v", vQ1 + 32 * j) if j < 3 else ("v", vO1)


class Gap:
    def __init__(self, mfma, slot, g):
        self.mfma = mfma
        self.slot, self.g = slot, g
        self.s, self.m, self.v = [], [], []
        self.units = 0
        self.pre = []
        self.locked = False
        self.extra = 0

    def free_v(self):
        return 0 if self.locked else min(2 - self.units, 3 - self.units - len(self.s)) + self.extra

    def cycles(self):
        return max(16, 8 + 4 * self.units, 4 + 4 * (self.units + len(self.s)))

    def free_s(self):
        return 0 if self.locked else (3 - self.units - len(self.s) if self.s else 1)


class Gen:
    def __init__(self, opt):
        self.o = dict(ldflag="nt", qflag="nt", stflag="sc1", reflag="", keepflag="", stamps=False, prefetch=True,
                      slow=True, touch=True, b1late=True, space=17, qdelay=14, m2=4, lat=5, d1end=138, blockgap=4,
                      sched="5:U4 9:U5 13:U6 17:q0 21:U7 25:U8 29:q1 33:U9 37:U10 41:q2 45:U11 49:U12 53:q3 57:U13 61:U14 65:U15 "
                            "103:U26:12 106:U27:12 110:U28:12 113:U29:12 117:U30:12 120:U31:12",
                      start="K0 Q0 Q1|V0 Q2|Q3|Q4|Q5 K1|V1 U2|U3", b1="K1")
        self.o.update(opt)
        self.gaps = []
        self.idx = {}

    def build_gaps(self):
        M = "v_mfma_f32_16x16x32_bf16"
        for s in range(-1, NITEM + 1):
            if s + 1 < NITEM:
                job, t, j = item(s + 1)
                S = vS + 8 * ((s + 1) & 1)
                for f in range(8):
                    kb, ks = f >> 2, f & 3
                    d = r("v", S + 4 * kb, 4)
                    c = "0" if ks == 0 else d
                    self.add(f"{M} {d}, {r('a', aK+4*f, 4)}, {Qreg(job, j, ks)}, {c}", s, f)
            if s - 1 >= 0:
                job, t, j = item(s - 1)
                P = r("v", vP + 4 * ((s - 1) & 1), 4)
                cls, ob = Obase(job, j)
                z = s - 1 == first_item(job, j)
                for f in range(8):
                    d = r(cls, ob + 4 * f, 4)
                    self.add(f"{M} {d}, {r('a', aV+4*f, 4)}, {P}, {'0' if z else d}", s, 8 + f)
                d = r("a", aL + 4 * j, 4)
                self.add(f"{M} {d}, {r('a', aONE, 4)}, {P}, {'0' if z else d}", s, 16)
        self.add(None, NITEM + 1, 0)

    def add(self, mfma, slot, g):
        self.idx[(slot, g)] = len(self.gaps)
        self.gaps.append(Gap(mfma, slot, g))

    def at(self, slot, g):
        while (slot, g) not in self.idx:
            g += 1
            if g > 16:
                slot, g = slot + 1, 0
        return self.idx[(slot, g)]

    def place(self, text, kind, units, lo, hi=None, what="", force=False):
        n = len(self.gaps) - 1
        k = lo
        while True:
            gp = self.gaps[k]
            if k == n:
                break
            if kind == "s":
                if gp.free_s() >= 1:
                    break
            elif gp.free_v() >= units:
                break
            k += 1
        if hi is not None and k > hi and force:
            cand = [x for x in range(lo, hi + 1) if not self.gaps[x].locked]
            k = min(cand, key=lambda x: (self.gaps[x].cycles(), x))
            gp = self.gaps[k]
        elif hi is not None and k > hi:
            raise Exception(f"deadline miss {what or text}: lo={lo} hi={hi} got {k}")
        if k == n:
            gp.v.append(text)
        elif kind == "s":
            gp.s.append(text)
        else:
            (gp.m if kind == "m" else gp.v).append(text)
            gp.units += units
        return k

    def stream(self, ops, lo, hi=None, what=""):
        k = lo
        prevkind = None
        rank = {"s": 0, "m": 1, "v": 2}
        for text, kind, units, sep in ops:
            start = k + sep
            if prevkind is not None and sep == 0 and rank[kind] < rank[prevkind]:
                start = k + 1
            start = min(start, len(self.gaps) - 1)
            k = self.place(text, kind, units, start, hi, what)
            prevkind = kind
        return k

    def place_softmax(self):
        for i in range(NITEM):
            S = vS + 8 * (i & 1)
            P = vP + 4 * (i & 1)
            lo = self.at(i, 0)
            if i == 0 or i == NITEM - 1:
                ops = []
                for e in range(8):
                    ops.append((f"v_exp_f32 v{S+e}, v{S+e}", "v", 2, 0))
                    if e & 1:
                        ops.append((f"v_cvt_pk_bf16_f32 v{P+e//2}, v{S+e-1}, v{S+e}", "v", 1, 1))
                if i == 0:
                    self.sm0 = [x[0] for x in ops if "exp" in x[0]] + ["s_nop 0"] + [x[0] for x in ops if "cvt" in x[0]]
                else:
                    self.smlast = [x[0] for x in ops]
                continue
            for e in range(8):
                k = self.idx[(i, 2 * e)]
                self.place(f"v_exp_f32 v{S+e}, v{S+e}", "v", 2, k, k)
                if e & 1:
                    k = self.idx[(i, 2 * e + 1)]
                    self.place(f"v_cvt_pk_bf16_f32 v{P+e//2}, v{S+e-1}, v{S+e}", "v", 1, k, k)

    def lds_at(self, t, A, B):
        sl = t % 10
        if t < 16:
            return A[sl // 4], (sl % 4) * 16384
        return (B if t & 1 else A)[sl // 4], (sl & 2) * 16384

    def kread(self, t, f):
        reg, off = self.lds_at(t, vKA, vKB)
        kb, ks = f >> 2, f & 3
        return f"ds_read_b128 {r('a', aK+4*f, 4)}, v{reg} offset:{off + kb*8192 + ks*256}"

    def vread(self, t, f, h):
        reg, off = self.lds_at(t, vVA, vVB)
        u, e = f >> 1, f & 1
        return f"ds_read_b64_tr_b16 {r('a', aV+4*f+2*h, 2)}, v{reg} offset:{off + h*8192 + u*256 + e*8}"

    def place_reads(self):
        self.need = {}
        self.rdpos = {}
        lat = self.o["lat"]
        tasks = []
        for n in range(len(STEPS)):
            t = STEPS[n][1]
            if n > 0:
                s = first(n) - 2
                for f in range(8):
                    tasks.append((self.idx[(s + 1, f)], self.idx[(s, f)], self.kread(t, f), ("K", n)))
            s = first(n)
            for f in range(8):
                for h in range(2):
                    if n == 0:
                        self.v0reads.append(self.vread(t, f, h))
                    else:
                        tasks.append((self.idx[(s + 1, 8 + f)], self.idx[(s, 8 + f)], self.vread(t, f, h), ("V", n)))
        tasks.sort(key=lambda x: x[0])
        for use, lo, txt, tag in tasks:
            if tag == ("K", 1) and self.o["b1late"]:
                pass
            k = self.place(txt, "m", 1, lo, use - lat, "read", force=True)
            self.need.setdefault(use, []).append(txt)
            self.rdpos.setdefault(tag, []).append(k)

    def dma(self, t, which):
        u = unit_of(t)
        fl = self.o["ldflag"] if t < 16 else self.o["reflag"]
        if t < 6 and self.o.get("keepflag") is not None:
            fl = self.o["keepflag"]
        out = []
        if "k" in which:
            out += [f"buffer_load_dwordx4 v{vDK}, s[{sK}:{sK+3}], s{sUNIT+u} offen offset:{o} {fl} lds ; K{t}" for o in (0, 1024)]
        if "v" in which:
            out += [f"buffer_load_dwordx4 v{vDV}, s[{sV}:{sV+3}], s{sUNIT+u} offen offset:{o} {fl} lds ; V{t}" for o in (2048, 3072)]
        return out

    def m0(self, t):
        return f"s_add_u32 m0, s{sW4K}, {(t % 10) * 16384}"

    def qload(self, job, j):
        return [f"buffer_load_dwordx4 {Qreg(job, j, ks)}, v{vQO}, s[{sQ}:{sQ+3}], s{sROW + job*NT1 + j} offen offset:{ks*64} {self.o['qflag']} ; Q{job}_{j}"
                for ks in range(4)]

    def scale_v(self, j):
        out = []
        for k in range(16):
            q = vQ1 + 16 * j + k
            a, b = vT + 8 + 2 * (k & 1), vT + 8 + 2 * (k & 1) + 1
            out += [f"v_lshlrev_b32 v{a}, 16, v{q}", f"v_and_b32 v{b}, s{sMASK}, v{q}",
                    f"v_mul_f32 v{a}, s{sC}, v{a}", f"v_mul_f32 v{b}, s{sC}, v{b}",
                    f"v_cvt_pk_bf16_f32 v{q}, v{a}, v{b}"]
        return out

    def scale_a(self, j):
        out = []
        for k in range(16):
            q = aQ2 + 16 * j + k
            a, b = vT, vT + 1
            out += [f"v_accvgpr_read_b32 v{b}, a{q}", f"v_lshlrev_b32 v{a}, 16, v{b}", f"v_and_b32 v{b}, s{sMASK}, v{b}",
                    f"v_mul_f32 v{a}, s{sC}, v{a}", f"v_mul_f32 v{b}, s{sC}, v{b}",
                    f"v_cvt_pk_bf16_f32 v{a}, v{a}, v{b}", f"v_accvgpr_write_b32 a{q}, v{a}"]
        return [(x, "v", 1, 0) for x in out]

    def lsum_ops(self, j):
        R = vR + j
        t = vT + 2
        return [(f"v_accvgpr_read_b32 v{R}, a{aL+4*j}", "v", 1, 0),
                (f"v_subrev_u32 v{t}, s{sLO}, v{R}", "v", 1, 0),
                (f"v_cmp_lt_u32 vcc, s{sRNG}, v{t}", "v", 1, 0),
                (f"v_rcp_f32 v{R}, v{R}", "v", 2, 0),
                (f"s_or_b64 s[{sFLAG}:{sFLAG+1}], s[{sFLAG}:{sFLAG+1}], vcc", "s", 0, 1)]

    def drain_ops(self, job, j, us=range(4)):
        cls, ob = Obase(job, j)
        R = vR + j
        ops = []
        for u in us:
            if cls == "v":
                b = ob + 8 * u
            else:
                b = vT + 8
                for k in (4, 5, 6, 7, 0, 1, 2, 3):
                    ops.append((f"v_accvgpr_read_b32 v{b+k}, a{ob+8*u+k}", "v", 1, 0))
            for k in range(8):
                ops.append((f"v_mul_f32 v{b+k}, v{R}, v{b+k}", "v", 1, 0))
            for k in range(4):
                ops.append((f"v_cvt_pk_bf16_f32 v{b+k}, v{b+2*k}, v{b+2*k+1}", "v", 1, 0))
            ops.append((f"buffer_store_dwordx4 {r('v', b, 4)}, v{vQO}, s[{sO}:{sO+3}], s{sROW + job*NT1 + j} offen offset:{u*64} {self.o['stflag'] if job == 0 else self.o.get('stflag2', self.o['stflag'])} ; O{job}_{j}", "m", 2, 1))
        return ops

    def barrier_gap(self, t):
        return self.at(first(t) - 3, 16)

    def schedule(self):
        o = self.o
        self.v0reads = []
        make_steps(o["m2"])
        self.build_gaps()
        G = self.gaps
        self.bars = {}
        for t in range(1, 16):
            k = self.barrier_gap(t)
            self.bars[t] = k
            if t == 1 and o["b1late"]:
                continue
            G[k].s += [f"@VMWAIT {o['b1'] if t == 1 else 'V%d' % t}", "s_barrier"]
            G[k].locked = True
        self.ebar = {}
        for t in range(17, 29, 2):
            k = self.idx[(first(t + 1) - 1, 16)]
            self.ebar[t] = k
            G[k].s += [f"@VMWAIT V{t+4}" if t >= 23 else "s_nop 0", "s_barrier"]
            G[k].locked = True
        if o["b1"] == "K1":
            k = self.idx[(first(1) - 1, 16)]
            G[k].s += ["@VMWAIT V1", "s_barrier"]
            G[k].locked = True
        self.place_softmax()
        self.place_reads()
        def grp(names):
            out = []
            for nm in names:
                if nm[0] == "Q":
                    out += self.qload(0, int(nm[1:]))
                else:
                    out += [self.m0(int(nm[1:])), "s_nop 0"] + self.dma(int(nm[1:]), {"K": "k", "V": "v", "U": "kv"}[nm[0]])
            return out
        st = [x.split() for x in o["start"].split("|")]
        self.init_groups = grp(st[0])
        G[self.idx[(-1, 0)]].pre += (["@VMWAIT Q0_0"] + self.ss(5) + grp(st[1]) + self.scale_v(0) + ["@VMWAIT K0", "s_barrier"] + self.ss(6) +
                                     [self.kread(0, f) for f in range(8)] + ["s_waitcnt lgkmcnt(0)"])
        G[self.idx[(0, 0)]].pre += ["@VMWAIT Q0_1"] + self.ss(7) + grp(st[2]) + self.scale_v(1) + ["s_nop 1"]
        G[self.idx[(1, 0)]].pre += (self.sm0 + ["@VMWAIT V0", "s_barrier"] + self.ss(8) + self.v0reads +
                                    ["@VMWAIT Q0_2"] + self.ss(9) + grp(st[3]) + self.scale_v(2) + ["s_waitcnt lgkmcnt(0)"])
        for j in range(3, NT1):
            G[self.idx[(j - 1, 0)]].pre += [f"@VMWAIT Q0_{j}"] + self.ss(7 + j) + grp(st[j + 1]) + self.scale_v(j) + ["s_nop 1"]
        if o["b1late"]:
            G[self.idx[(NT1 - 2, 0)]].pre += ["@VMWAIT K1", "s_barrier"] + self.ss(13)
        self.insert_lgkm_waits()
        k = 0
        order = []
        for ent in o["sched"].split():
            p = ent.split(":")
            sl, gname = float(p[0]), p[1]
            sp = int(p[2]) if len(p) > 2 else o["space"]
            lo = max(k + 1, self.at(int(sl), int(round((sl - int(sl)) * 17))))
            t = int(gname[1:])
            if gname[0] == "q":
                ops = [(x, "m", 2, sp) for x in self.qload(1, t)]
                ops[0] = ops[0][:3] + (0,)
            else:
                if t >= 26:
                    lo = max(lo, self.ebar[(t - 10) | 1] + 1)
                elif t >= 10:
                    lo = max(lo, self.bars[t - 9] + 1)
                ops = [(self.m0(t), "s", 0, 0)] + [(x, "m", 2, sp) for x in self.dma(t, "kv")]
                ops[1] = ops[1][:3] + (1,)
            k = self.stream(ops, lo, what=gname)
            order.append((gname, k))
        self.order = order
        q2bar = {}
        for n, (gname, kk) in enumerate(order):
            if gname[0] == "q":
                q2bar[int(gname[1:])] = self.place(f"@VMWAIT Q1_{gname[1:]}", "s", 0, kk + int(o["qdelay"] * 17))
        for gname, kk in order:
            if gname[0] == "U":
                t = int(gname[1:])
                assert kk < (self.bars[t] if t < 16 else self.ebar[(t | 1) - 4]), (gname, "issued after its barrier")
        for tag, regs in (("K", vKA), ("V", vVA)):
            self.stream([(f"v_add_u32 v{x}, s{sSWAP}, v{x}", "v", 1, 0) for x in regs], max(self.rdpos[(tag, 15)]), min(self.rdpos[(tag, 16)]) - 1, "swap")
        k = 0
        for n in range(NT2):
            lo = max(k, q2bar[n] + 1)
            hi = self.idx[(J2 + n - 1, 0)] - 2
            k = self.stream(self.scale_a(n), lo, hi, f"scale{n}")
        self.scale_end = k
        lend = {}
        k = 0
        for j in range(NT1):
            fin = self.idx[(first(15) + j + 1, 16)]
            hi = self.idx[(first(16) + j + 1, 16)] - 2 if j < NT2 else None
            k = self.stream(self.lsum_ops(j)[:1], max(k, fin + 5), hi, "lsum")
            lend[j] = k
        import copy
        lo_x, hi_x = self.idx[(J2 - 4, 0)], self.idx[(o["d1end"], 0)]
        cand = [x for x in range(lo_x, hi_x) if not G[x].locked]
        nx = 0
        while True:
            save = copy.deepcopy(self.gaps)
            G = self.gaps
            for q in range(nx):
                G[cand[(q * len(cand)) // nx]].extra = 1
            k = 0
            try:
                for j in range(NT1):
                    hi = self.idx[(first_item(1, 3) + 1, 8)] - 2 if j == 0 else hi_x
                    k = self.stream(self.lsum_ops(j)[1:], max(k, lend[j]), hi, f"lrest{j}")
                    k = self.stream(self.drain_ops(0, j), k, hi, f"drain{j}")
                break
            except Exception as e:
                if not str(e).startswith("deadline"):
                    raise
                self.gaps = save
                nx += 4
        for gp in G:
            gp.extra = 0
        self.nx = nx
        self.drain1_end = k
        lastg = self.idx[(NITEM, 8)]
        rest = []
        kcur = self.at(NITEM - 1, 0)
        for x in self.smlast:
            un, sep = (2, 0) if "exp" in x else (1, 1)
            if not rest:
                kt = kcur + sep
                while kt < lastg and G[kt].free_v() < un:
                    kt += 1
                if kt < lastg:
                    self.place(x, "v", un, kt, kt)
                    kcur = kt
                    continue
            rest.append(x)
        G[lastg].pre += [x for x in rest if "exp" in x] + ["s_nop 0"] + [x for x in rest if "cvt" in x] + ["s_nop 1"]
        txt = lambda ops: [x[0] for x in ops]
        def blockat(i, g):
            k = self.at(min(i, NITEM + 1), g if i <= NITEM else 0)
            lst = G[k].pre if G[k].mfma else G[k].v
            if i >= NITEM - 1:
                lst.append("s_nop 7")
            return lst
        for j in range(3):
            li = last_item(1, j)
            code = txt(self.lsum_ops(j)) + txt(self.drain_ops(1, j))
            if li == NITEM - 1:
                G[-1].v += ["s_nop 7"] + code
            else:
                blockat(li + 2, o["blockgap"]).extend(code)
        li = last_item(1, 3)
        ob = Obase(1, 3)[1]
        R = vR + 3
        t = vT + 1
        def two(name, lo_code, hi_code):
            return ([f"s_cmp_lg_u32 s{sSWAP}, 0", f"s_cbranch_scc1 L_{name}_hi"] + lo_code + [f"s_branch L_{name}_end", f"L_{name}_hi:"] +
                    ["~" + x for x in hi_code] + [f"L_{name}_end:"])
        send = lambda b: [f"ds_write_b128 v{vXW}, {r('v', b+4*q, 4)} offset:{q*1024}" for q in range(4)]
        recv = lambda b: [f"ds_read_b128 {r('v', b+4*q, 4)}, v{vXR} offset:{q*1024}" for q in range(4)]
        def fin(keep, got, us):
            return [f"v_add_f32 v{keep+q}, v{keep+q}, v{got+q}" for q in range(16)] + txt(self.drain_ops(1, 3, us))
        blockat(li + 2, o["blockgap"]).extend([f"ds_write_b128 v{vXW}, {r('a', aL+12, 4)} offset:4096"] + two("snd", send(ob + 16), send(ob)))
        blockat(li + 3, o["blockgap"]).extend(["@LGKM ds_write", "s_barrier", f"ds_read_b32 v{t}, v{vXR} offset:4096"] + two("rcv", recv(ob + 16), recv(ob)))
        lo_ = txt(self.lsum_ops(3))
        blockat(li + 4, o["blockgap"]).extend(["@LGKM rcv", lo_[0], f"v_add_f32 v{R}, v{R}, v{t}"] + lo_[1:] + two("fin", fin(ob, ob + 16, (0, 1)), fin(ob + 16, ob, (2, 3))))
        self.insert_lgkm_waits(final=True)

    def insert_lgkm_waits(self, final=False):
        G = self.gaps
        issued = []
        done = 0
        for k, gp in enumerate(G):
            gp.s = [x for x in gp.s if not x.startswith("s_waitcnt lgkmcnt")]
            lists = [gp.pre] if gp.mfma else [gp.pre, gp.v]
            for lst in lists:
                for n, x in enumerate(lst):
                    if x.startswith("ds_"):
                        issued.append(x)
                    elif x.startswith("s_waitcnt lgkmcnt(0)"):
                        done = len(issued)
                    elif x.startswith("@LGKM"):
                        key = "ds_write" if "write" in x else f", v{vXR} "
                        pos = max(q for q, y in enumerate(issued) if key in y)
                        lst[n] = f"s_waitcnt lgkmcnt({min(15, len(issued) - 1 - pos)}) ; xchg"
                        done = max(done, pos + 1)
            nd = self.need.get(k + 1, [])
            if nd:
                nxt = [x for x in G[k + 1].pre if x.startswith("ds_")]
                pos = max(len(issued) - 1 - issued[::-1].index(x) for x in nd)
                if pos >= done:
                    n = min(15, len(issued) - 1 - pos)
                    gp.s.insert(0, f"s_waitcnt lgkmcnt({n})")
                    done = len(issued) - n
            for x in gp.m:
                if x.startswith("ds_"):
                    issued.append(x)

    def prologue(self):
        o = self.o
        L = []
        a = L.append
        if o["stamps"]:
            a("s_memrealtime s[90:91]"); a("s_memtime s[92:93]")
        a("s_cmp_ge_u32 s2, 256")
        a("s_cbranch_scc1 L_exit")
        a("s_load_dwordx8 s[4:11], s[0:1], 0")
        if o["stamps"]:
            a("s_load_dwordx4 s[12:15], s[0:1], 32")
        a(f"v_lshrrev_b32 v10, 6, v0              ; wave")
        a(f"v_and_b32 v11, 63, v0                 ; lane")
        a(f"v_readfirstlane_b32 s{sTMP}, v10")
        a(f"v_and_b32 v12, 15, v0                 ; i")
        a(f"v_lshrrev_b32 v13, 4, v11             ; g")
        a(f"v_and_b32 v14, 3, v0                  ; lane&3")
        a(f"v_bfe_u32 v15, v0, 2, 2               ; (lane>>2)&3")
        a(f"s_lshl_b32 s{sW4K}, s{sTMP}, 12")
        a(f"v_lshlrev_b32 v{vQO}, 8, v12")
        a(f"v_lshl_add_u32 v{vQO}, v13, 4, v{vQO}")
        a(f"v_lshl_add_u32 v{vQO}, v10, 12, v{vQO}")
        a(f"v_lshlrev_b32 v16, 1, v10")
        a(f"v_and_b32 v16, 2, v16")
        a(f"v_xor_b32 v16, v16, v15")
        a(f"v_lshlrev_b32 v17, 11, v10")
        a(f"v_lshl_add_u32 v17, v13, 6, v17       ; w*2048 + g*64")
        a(f"v_lshl_add_u32 v{vDK}, v14, 8, v17")
        a(f"v_lshl_add_u32 v{vDK}, v16, 4, v{vDK}")
        a(f"v_lshl_add_u32 v{vDV}, v15, 8, v17")
        a(f"v_lshl_add_u32 v{vDV}, v14, 4, v{vDV}")
        a(f"s_mul_i32 s{sTMP}, s2, 155648")
        a(f"s_lshl_b32 s3, s2, 17")
        a(f"s_mov_b32 s{sK+2}, 131072")
        a(f"s_mov_b32 s{sK+3}, 0x20000")
        a(f"s_mov_b32 s{sQ+2}, 155648")
        a(f"s_mov_b32 s{sQ+3}, 0x20000")
        a(f"s_mov_b32 s{sV+2}, {131072+2048}")
        a(f"s_mov_b32 s{sV+3}, 0x20000")
        a(f"s_mov_b32 s{sO+2}, 155648")
        a(f"s_mov_b32 s{sO+3}, 0x20000")
        for u in range(16):
            a(f"s_mov_b32 s{sUNIT+u}, {u*8192}")
        for j in range(NT1 + NT2):
            a(f"s_mov_b32 s{sROW+j}, {j*16384}")
        if o["prefetch"]:
            a("s_getpc_b64 s[72:73]")
            a("L_pc:")
            if o["touch"]:
                a("s_add_u32 s72, s72, L_main-L_pc")
                a("s_addc_u32 s73, s73, 0")
            a("s_lshr_b32 s74, s2, 3")
            a("s_and_b32 s74, s74, 31")
            a("s_lshl_b32 s74, s74, 11")
            a("v_lshlrev_b32 v18, 9, v10")
            a("v_lshl_add_u32 v18, v14, 7, v18")
            a("v_add_u32 v18, s74, v18")
            a("v_min_u32 v18, L_codeend-%s-4, v18" % ("L_main" if o["touch"] else "L_pc"))
            a(f"global_load_dword v{vT+23}, v18, s[72:73] ; PF")
        a("s_waitcnt lgkmcnt(0)")
        L += self.ss(0)
        a(f"s_add_u32 s{sK}, s6, s3")
        a(f"s_addc_u32 s{sK+1}, s7, 0")
        a(f"s_add_u32 s{sQ}, s4, s{sTMP}")
        a(f"s_addc_u32 s{sQ+1}, s5, 0")
        a(f"s_add_u32 s{sV}, s8, s3")
        a(f"s_addc_u32 s{sV+1}, s9, 0")
        a(f"s_sub_u32 s{sV}, s{sV}, 2048")
        a(f"s_subb_u32 s{sV+1}, s{sV+1}, 0")
        L += self.init_groups + self.ss(1)
        a(f"s_add_u32 s{sO}, s10, s{sTMP}")
        a(f"s_addc_u32 s{sO+1}, s11, 0")
        for nm in o.get("tlb", ""):
            srd = {"o": sO, "q": sQ, "k": sK, "v": sV}[nm]
            a(f"v_and_b32 v19, 15, v0")
            a(f"v_lshl_add_u32 v19, v10, 4, v19")
            a(f"v_mul_u32_u24 v19, {o.get('tlbstep', 4096)}, v19")
            a(f"v_add_u32 v19, 2048, v19")
            a(f"buffer_load_dword v{vT+22}, v19, s[{srd}:{srd+3}], 0 offen ; TLB")
        a(f"v_lshrrev_b32 v16, 1, v15")
        a(f"v_and_b32 v17, 1, v15")
        a(f"v_lshlrev_b32 v18, 12, v16")
        a(f"v_lshl_add_u32 v18, v17, 10, v18")
        a(f"v_and_b32 v16, 2, v15")
        a(f"v_xor_b32 v16, v16, v13")
        a(f"v_lshl_add_u32 v18, v16, 6, v18")
        a(f"v_lshl_add_u32 v{vKA[0]}, v14, 4, v18")
        a(f"v_add_u32 v{vKA[1]}, 0x10000, v{vKA[0]}")
        a(f"v_add_u32 v{vKA[2]}, 0x20000, v{vKA[0]}")
        a(f"v_lshrrev_b32 v16, 1, v13")
        a(f"v_and_b32 v17, 1, v13")
        a(f"v_lshlrev_b32 v18, 12, v16")
        a(f"v_lshl_add_u32 v18, v17, 10, v18")
        a(f"v_lshl_add_u32 v18, v12, 4, v18      ; (i>>2)*64+(i&3)*16 = i*16")
        a(f"v_add_u32 v{vVA[0]}, 2048, v18")
        a(f"v_add_u32 v{vVA[1]}, 0x10000, v{vVA[0]}")
        a(f"v_add_u32 v{vVA[2]}, 0x20000, v{vVA[0]}")
        a(f"s_and_b32 s{sSWAP}, s{sW4K}, 8192")
        a(f"s_sub_u32 s{sROW+9}, s{sROW+9}, s{sSWAP}")
        a(f"s_lshl_b32 s{sSWAP}, s{sSWAP}, 1")
        a(f"s_sub_u32 s3, 16384, s{sSWAP}")
        for x, y in zip(vKB + vVB, vKA + vVA):
            a(f"v_add_u32 v{x}, s3, v{y}")
        a(f"v_mul_u32_u24 v16, 5120, v10")
        a(f"v_lshl_add_u32 v16, v11, 4, v16")
        a(f"v_add_u32 v{vXW}, {XBASE}, v16")
        a(f"v_xor_b32 v16, 2, v10")
        a(f"v_mul_u32_u24 v16, 5120, v16")
        a(f"v_lshl_add_u32 v16, v11, 4, v16")
        a(f"v_add_u32 v{vXR}, {XBASE}, v16")
        a(f"v_cmp_eq_u32 vcc, 0, v14")
        a(f"v_mov_b32 v17, 0x3f803f80")
        a(f"s_nop 0")
        a(f"v_cndmask_b32 v16, 0, v17, vcc")
        for k in range(4):
            a(f"v_accvgpr_write_b32 a{aONE+k}, v16")
        a(f"s_mov_b32 s{sC}, {C_SCALE:#x}")
        a(f"s_mov_b32 s{sMASK}, 0xffff0000")
        a(f"s_mov_b32 s{sLO}, {L_LO:#x}")
        a(f"s_mov_b32 s{sRNG}, {L_HI-L_LO:#x}")
        a(f"s_mov_b64 s[{sFLAG}:{sFLAG+1}], 0")
        return L

    def ss(self, n):
        return ["s_memtime s[74:75]", "s_waitcnt lgkmcnt(0)", f"v_writelane_b32 v0, s74, {n}"] if self.o.get("startstamps") else []

    def linear(self):
        L = self.prologue() + self.ss(2) + (["@VMWAIT PF"] if self.o["prefetch"] else []) + self.ss(3) + ["@MAIN"] + self.ss(4)
        st = self.o["stamps"]
        tl = {self.idx[(first(t), 0)]: t for t in range(32)} if self.o.get("timeline") else {}
        tl_end = self.idx[(NITEM - 1, 8)]
        for k, gp in enumerate(self.gaps):
            if k in tl:
                if tl[k] > 0:
                    L += ["s_waitcnt lgkmcnt(0)", f"v_writelane_b32 v0, s74, {tl[k]-1}", f"v_writelane_b32 v0, s72, {tl[k]-1+32}"]
                L += ["s_memtime s[74:75]", "s_memrealtime s[72:73]"] if tl[k] > 0 else []
                if tl[k] == 0:
                    gp.pre = gp.pre + ["s_memtime s[74:75]", "s_memrealtime s[72:73]"]
            if tl and k == tl_end:
                L += ["s_waitcnt lgkmcnt(0)", f"v_writelane_b32 v0, s74, 31", f"v_writelane_b32 v0, s72, 63"]
            if st and k == self.idx[(4, 0)]:
                L += gp.pre + ["s_memrealtime s[84:85]", "s_memtime s[86:87]"]
            elif st and k == self.idx[(J2, 0)]:
                L += gp.pre + ["s_memrealtime s[82:83]"]
            elif st and gp.mfma is None:
                L += gp.pre + ["s_memrealtime s[88:89]", "s_memtime s[80:81]"]
            else:
                L += gp.pre
            if gp.mfma:
                if gp.g == 0 or (gp.slot >= NITEM - 1 and gp.g == 8):
                    L.append(f"; ---- slot {gp.slot}")
                L.append(gp.mfma)
            L += gp.s + gp.m + gp.v
        out = []
        vm = []
        done = 0
        self.maxout = 0
        for x in L:
            if x.startswith("~"):
                out.append(x[1:])
                continue
            if x.startswith("@VMWAIT"):
                tag = x.split()[1]
                pos = max(n for n, y in enumerate(vm) if y == tag)
                n = len(vm) - 1 - pos
                assert n <= 63, (tag, n)
                if pos >= done:
                    done = pos + 1
                out.append(f"s_waitcnt vmcnt({n})")
                continue
            if x.startswith(("buffer_", "global_")) and not x.startswith("buffer_wbl2"):
                vm.append(x.split(";")[-1].strip())
                self.maxout = max(self.maxout, len(vm) - done)
            out.append(x)
        return out

    def slow_path(self):
        L = []
        a = L.append
        M = "v_mfma_f32_16x16x32_bf16"
        a("L_slow:")
        a("s_waitcnt vmcnt(0)")
        a("v_mbcnt_lo_u32_b32 v11, -1, 0")
        a("v_mbcnt_hi_u32_b32 v11, -1, v11")
        a("v_and_b32 v12, 15, v11")
        a("v_lshrrev_b32 v13, 4, v11")
        a("v_lshlrev_b32 v2, 8, v12")
        a("v_lshl_add_u32 v2, v13, 4, v2           ; K offset")
        a("v_lshlrev_b32 v3, 1, v12")
        a("v_lshl_add_u32 v3, v13, 10, v3")
        a("v_add_u32 v3, 2048, v3")
        a("v_lshlrev_b32 v4, 8, v12")
        a("v_lshl_add_u32 v4, v13, 3, v4")
        a(f"v_add_u32 v4, s{sW4K}, v4")
        a("s_mov_b32 s76, 0")
        a("L_slow_sub:")
        for ks in range(4):
            a(f"buffer_load_dwordx4 v[{64+4*ks}:{67+4*ks}], v{vQO}, s[{sQ}:{sQ+3}], s76 offen offset:{ks*64}")
        a("v_mov_b32 v5, 0xff800000")
        a("s_mov_b32 s77, 0")
        a("L_slow_max:")
        for pas in range(2):
            if pas == 1:
                a("v_mov_b32 v6, v5")
                a("s_nop 1")
                a("v_permlane32_swap_b32 v5, v6")
                a("s_nop 1")
                a("v_max_f32 v5, v5, v6")
                a("v_mov_b32 v6, v5")
                a("s_nop 1")
                a("v_permlane16_swap_b32 v5, v6")
                a("s_nop 1")
                a("v_max_f32 v5, v5, v6")
                a(f"v_mul_f32 v5, s{sC}, v5")
                a("v_mov_b32 v7, 0")
                for k in range(32):
                    a(f"v_mov_b32 v{96+k}, 0")
                a("s_mov_b32 s77, 0")
                a("L_slow_pv:")
            a("s_add_u32 s78, s77, 4096")
            for f in range(8):
                a(f"buffer_load_dwordx4 v[{128+4*f}:{131+4*f}], v2, s[{sK}:{sK+3}], s{77 + (f >> 2)} offen offset:{(f & 3)*64}")
            if pas == 1:
                for f in range(8):
                    for jj in range(8):
                        a(f"buffer_load_ushort v{160+8*f+jj}, v3, s[{sV}:{sV+3}], s{77 + (jj >> 2)} offen offset:{(jj & 3)*256 + f*32}")
                    if f == 3:
                        a("s_waitcnt vmcnt(16)")
            a("s_waitcnt vmcnt(0)")
            for f in range(8):
                kb, ks = f >> 2, f & 3
                d = f"v[{16+4*kb}:{19+4*kb}]"
                a(f"{M} {d}, v[{128+4*f}:{131+4*f}], v[{64+4*ks}:{67+4*ks}], {'0' if ks == 0 else d}")
            a("s_nop 7")
            a("s_nop 1")
            if pas == 0:
                for k in range(0, 8, 2):
                    a(f"v_max3_f32 v5, v5, v{16+k}, v{17+k}")
                a("s_add_u32 s77, s77, 8192")
                a("s_cmp_lt_u32 s77, 131072")
                a("s_cbranch_scc1 L_slow_max")
            else:
                for k in range(8):
                    a(f"v_fma_f32 v{16+k}, v{16+k}, s{sC}, -v5")
                for k in range(8):
                    a(f"v_exp_f32 v{16+k}, v{16+k}")
                a("s_nop 0")
                for k in range(8):
                    a(f"v_add_f32 v7, v7, v{16+k}")
                for k in range(4):
                    a(f"v_cvt_pk_bf16_f32 v{32+k}, v{16+2*k}, v{17+2*k}")
                for k in range(32):
                    a(f"v_lshl_or_b32 v{224+k}, v{161+2*k}, 16, v{160+2*k}")
                a("s_nop 1")
                for f in range(8):
                    d = f"v[{96+4*f}:{99+4*f}]"
                    a(f"{M} {d}, v[{224+4*f}:{227+4*f}], v[32:35], {d}")
                a("s_add_u32 s77, s77, 8192")
                a("s_cmp_lt_u32 s77, 131072")
                a("s_cbranch_scc1 L_slow_pv")
        a("v_mov_b32 v6, v7")
        a("s_nop 1")
        a("v_permlane32_swap_b32 v7, v6")
        a("s_nop 1")
        a("v_add_f32 v7, v7, v6")
        a("v_mov_b32 v6, v7")
        a("s_nop 1")
        a("v_permlane16_swap_b32 v7, v6")
        a("s_nop 1")
        a("v_add_f32 v7, v7, v6")
        a("v_rcp_f32 v7, v7")
        a("s_nop 7")
        for k in range(32):
            a(f"v_mul_f32 v{96+k}, v7, v{96+k}")
        for k in range(16):
            a(f"v_cvt_pk_bf16_f32 v{128+k}, v{96+2*k}, v{97+2*k}")
        for f in range(8):
            a(f"buffer_store_dwordx2 v[{128+2*f}:{129+2*f}], v4, s[{sO}:{sO+3}], s76 offen offset:{f*32}")
        a("s_waitcnt vmcnt(0)")
        a("s_add_u32 s76, s76, 16384")
        a(f"s_cmp_lt_u32 s76, {16384*(NT1+NT2)}")
        a("s_cbranch_scc1 L_slow_sub")
        return L

    def stamp_out(self):
        if self.o["stamps"] == "dbg":
            L = ["s_waitcnt vmcnt(0) lgkmcnt(0)", "s_memrealtime s[94:95]", "s_memtime s[96:97]", "s_waitcnt lgkmcnt(0)",
                 "s_mov_b32 s76, s12", "s_mov_b32 s77, s13", "s_mov_b32 s78, 256", "s_mov_b32 s79, 0x20000",
                 "v_and_b32 v2, 63, v0", "v_lshlrev_b32 v1, 2, v2", "v_mov_b32 v4, 0"]
            for n, sr in enumerate([90, 84, 82, 88, 94]):
                L += [f"s_not_b32 s3, s{sr}", f"v_writelane_b32 v4, s3, {2*n}", f"v_writelane_b32 v4, s{sr}, {2*n+1}"]
            L += ["s_sub_u32 s3, s80, s86", "v_writelane_b32 v4, s3, 10", "s_not_b32 s3, s3", "v_writelane_b32 v4, s3, 12", "s_sub_u32 s3, s96, s92", "v_writelane_b32 v4, s3, 11"]
            L += ["v_cmp_gt_u32 vcc, 16, v2", "s_and_saveexec_b64 s[98:99], vcc", "buffer_atomic_umax v4, v1, s[76:79], 0 offen"]
            return L
        L = ["s_waitcnt vmcnt(0) lgkmcnt(0)", "s_memrealtime s[94:95]", "s_memtime s[96:97]", "s_waitcnt lgkmcnt(0)",
             "v_mov_b32 v30, v0", "v_mbcnt_lo_u32_b32 v0, -1, 0", "v_mbcnt_hi_u32_b32 v0, -1, v0", f"s_lshr_b32 s3, s{sW4K}, 6", "v_add_u32 v0, s3, v0",
             "s_mov_b32 s76, s14", "s_mov_b32 s77, s15", "s_mov_b32 s78, 0x1000000", "s_mov_b32 s79, 0x20000",
             "v_lshrrev_b32 v1, 6, v0", "v_lshlrev_b32 v1, 6, v1", "s_lshl_b32 s3, s2, 8", "v_add_u32 v1, s3, v1"]
        for n, s in enumerate([90, 91, 92, 93, 94, 95, 96, 97, 84, 85, 86, 82, 88, 89, 80, 81]):
            L.append(f"v_mov_b32 v{4+n}, s{s}")
        if self.o.get("timeline") or self.o.get("startstamps"):
            L += ["v_lshlrev_b32 v2, 2, v0", "s_lshl_b32 s3, s2, 10", "s_add_u32 s3, s3, 0x100000", "buffer_store_dword v30, v2, s[76:79], s3 offen"]
        L += ["v_and_b32 v2, 63, v0", "v_cmp_eq_u32 vcc, 0, v2", "s_and_saveexec_b64 s[98:99], vcc"]
        for n in range(4):
            L.append(f"buffer_store_dwordx4 v[{4+4*n}:{7+4*n}], v1, s[76:79], 0 offen offset:{16*n}")
        return L

    def text(self):
        self.schedule()
        body = self.linear()
        verify([x for x in body if x != "@MAIN"])
        tail = [f"s_cmp_lg_u64 s[{sFLAG}:{sFLAG+1}], 0", "s_cbranch_scc1 L_slow"] if self.o["slow"] else []
        if self.o.get("forceslow"):
            tail = ["s_branch L_slow"]
        tail += ["L_done:"]
        if self.o["stamps"]:
            tail += self.stamp_out()
        tail += ["L_exit:", "s_endpgm", "L_codeend:"]
        cut = body.index("@MAIN")
        if self.o["touch"]:
            main, chain = add_markers(body[cut + 1:] + tail)
            body = body[:cut] + chain + ["s_branch L_main", ".p2align 12", "L_main:"] + main
            tail = []
        else:
            body = body[:cut] + body[cut + 1:]
        if self.o["slow"]:
            sp = self.slow_path()
            verify(sp)
            tail += sp + ["s_branch L_done"]
        hdr = open("header.txt").read()
        fmt = lambda x: (x if x.endswith(":") or x.startswith((";", ".")) else "    " + x)
        return (hdr + f""".amdgcn_target "amdgcn-amd-amdhsa--gfx950"
.text
.globl {KN}
.p2align 8
.type {KN},@function
{KN}:
""" + "\n".join(fmt(x) for x in body + tail) + f"""
.section .rodata,"a"
.p2align 6
.amdhsa_kernel {KN}
  .amdhsa_next_free_vgpr 512
  .amdhsa_next_free_sgpr 102
  .amdhsa_accum_offset 256
  .amdhsa_group_segment_fixed_size 0
  .amdhsa_kernarg_size 48
  .amdhsa_user_sgpr_count 2
  .amdhsa_user_sgpr_kernarg_segment_ptr 1
  .amdhsa_system_sgpr_workgroup_id_x 1
.end_amdhsa_kernel
""")


def isize(x):
    x = x.split(";")[0].strip()
    if not x or x.endswith(":") or x.startswith("."):
        return 0
    op, _, rest = x.partition(" ")
    if op.startswith(("v_mfma", "ds_", "buffer_", "global_", "v_accvgpr", "v_cvt_pk", "v_fma", "v_lshl_add", "v_lshl_or", "v_bfe", "v_max3",
                      "v_writelane", "v_mbcnt", "v_pk_", "s_load", "s_mem", "v_add3", "v_mul_lo", "v_perm_")):
        return 8
    if "_dpp" in op or "row_" in rest or "quad_perm" in rest:
        return 8
    if op.startswith(("s_waitcnt", "s_nop", "s_barrier", "s_cbranch", "s_branch", "s_endpgm", "s_setprio", "s_sleep")):
        return 4
    for t in rest.split(","):
        t = t.strip().split()[0] if t.strip() else ""
        if re.fullmatch(r"-?(0x[0-9a-fA-F]+|\d+)", t):
            v = int(t, 0)
            if not -16 <= v <= 64:
                return 8
        elif t.startswith("L_"):
            return 8
    return 4


def add_markers(L, nw=4):
    out, addr, page, marks = [], 0, 1, []
    n = 0
    while n < len(L):
        x = L[n]
        if addr >= page * 4096:
            best, a2 = None, addr
            for m in range(n, len(L)):
                if a2 + 4 > page * 4096 + 64:
                    break
                prev = L[m - 1] if m > n else (out[-1] if out else "")
                if prev.startswith("v_mfma") and not L[m].startswith(("s_", "@")) and isize(L[m]):
                    best = m
                    break
                a2 += isize(L[m])
            if best is None:
                best = n
            for m in range(n, best):
                out.append(L[m]); addr += isize(L[m])
            marks.append(len(out))
            out.append(None); addr += 4
            n = best
            page += 1
            continue
        out.append(x); addr += isize(x); n += 1
    per = (len(marks) + nw - 1) // nw
    res = []
    mi = {p: k for k, p in enumerate(marks)}
    for k, x in enumerate(out):
        if x is None:
            m = mi[k]
            last = (m + 1) % per == 0 or m + 1 == len(marks)
            res += [f"L_m{m}:", f"s_cbranch_execz {'L_back' if last else 'L_m%d' % (m + 1)}"]
        else:
            res.append(x)
    chain = ["s_mov_b64 exec, 0"]
    for w in range(nw):
        if w * per < len(marks):
            chain += [f"s_cmp_eq_u32 s{sW4K}, {w * 4096}", f"s_cbranch_scc1 L_m{w * per}"]
    chain += ["L_back:", "s_mov_b64 exec, -1"]
    return res, chain


def regs(tok):
    tok = tok.strip().lstrip("-")
    m = re.fullmatch(r"([va])(\d+)", tok)
    if m:
        return {(m.group(1), int(m.group(2)))}
    m = re.fullmatch(r"([va])\[(\d+):(\d+)\]", tok)
    if m:
        return {(m.group(1), k) for k in range(int(m.group(2)), int(m.group(3)) + 1)}
    return set()


def parse(x):
    x = x.split(";")[0].strip()
    if not x or x.endswith(":"):
        return None
    op, _, rest = x.partition(" ")
    ops = [t.strip() for t in rest.split(",")]
    last = ops[-1].split()
    if last:
        ops[-1] = last[0]
    d = dict(op=op, w=set(), rd=set(), kind="s", c=set(), ws=1, m0w=False)
    if op == "s_nop":
        d["ws"] = int(ops[0]) + 1
    if op.startswith("s_") and ops and ops[0] == "m0":
        d["m0w"] = True
    if op.startswith("v_mfma"):
        d.update(kind="mfma", w=regs(ops[0]), rd=regs(ops[1]) | regs(ops[2]), c=regs(ops[3]))
    elif op.startswith("v_"):
        d["kind"] = "valu"
        if op.startswith("v_cmp") or op.startswith("v_readfirstlane"):
            d["rd"] = set().union(*[regs(t) for t in ops[1:]])
        elif op.startswith("v_permlane"):
            d["w"] = regs(ops[0]) | regs(ops[1]); d["rd"] = set(d["w"])
        else:
            d["w"] = regs(ops[0]); d["rd"] = set().union(*[regs(t) for t in ops[1:]])
        d["trans"] = op.startswith(("v_exp", "v_rcp"))
    elif op.startswith("ds_write"):
        d.update(kind="ds", rd=regs(ops[0]) | regs(ops[1]))
    elif op.startswith("ds_read"):
        d.update(kind="ds", w=regs(ops[0]), rd=regs(ops[1]))
    elif op.startswith("buffer_store"):
        d.update(kind="store", rd=regs(ops[0]) | regs(ops[1]), data=regs(ops[0]))
    elif op.startswith(("buffer_load", "global_load")):
        if " lds" in x:
            d.update(kind="dma", rd=regs(ops[0]))
        else:
            d.update(kind="load", w=regs(ops[0]), rd=regs(ops[1]))
    return d


def verify(L):
    ins = [(x, parse(x)) for x in L]
    ins = [(x, d) for x, d in ins if d]
    bad = 0
    for n, (x, d) in enumerate(ins):
        dist = 0
        for m in range(n - 1, max(-1, n - 14), -1):
            y, p = ins[m]
            need = 0
            if p["kind"] == "mfma":
                if d["kind"] == "mfma":
                    if p["w"] & d["rd"]:
                        need = 8
                    elif p["w"] & d["c"] and p["w"] != d["c"]:
                        need = 6
                    elif p["w"] & d["w"] and p["w"] != d["w"]:
                        need = 6
                elif p["w"] & (d["rd"] | d["w"]):
                    need = 8
                elif d["kind"] == "valu" and p["c"] & d["w"]:
                    need = 3
            elif p["kind"] == "valu":
                if d["kind"] == "mfma" and p["w"] & (d["rd"] | d["c"]):
                    need = 2
                elif d["kind"] == "valu" and p.get("trans") and not d.get("trans") and p["w"] & d["rd"]:
                    need = 1
                elif d["op"].startswith("v_permlane") and p["w"] & d["rd"]:
                    need = 2
                elif d["op"].startswith("v_readfirstlane") and p["w"] & d["rd"]:
                    need = 1
            elif p["kind"] == "store":
                if p["data"] & d["w"]:
                    need = 2
            elif p["m0w"] and d["kind"] == "dma":
                need = 1
            if dist < need:
                print(f"HAZARD need {need} have {dist}:\n   {y}\n   {x}", file=sys.stderr)
                bad += 1
            dist += p["ws"]
    assert bad == 0


if __name__ == "__main__":
    opt = {}
    out = sys.argv[1]
    for kv in sys.argv[2:]:
        k, v = kv.split("=", 1)
        try:
            v = eval(v)
        except Exception:
            pass
        opt[k] = v
    g = Gen(opt)
    t = g.text()
    open(out, "w").write(t)
    G = g.gaps
    print("   issue ends:", " ".join(f"{n}@{G[k].slot}" for n, k in g.order), file=sys.stderr)
    est = lambda a, b: sum(x.cycles() + 4 * len([y for y in x.pre if not y.startswith("~")]) for x in G[:-1] if a <= x.slot < b)
    print(f"{out}: max vm outstanding {g.maxout}, scale ends slot {G[g.scale_end].slot}, drain1 ends at slot {G[g.drain1_end].slot} (overflow {g.nx}), tail instrs {len(G[-1].v)}, "
          f"free units job1 {sum(x.free_v() for x in G if x.slot < J2)}, job2 {sum(max(0, x.free_v()) for x in G[:-1] if x.slot >= J2)}, items {NITEM}, est cycles job1(6..) {est(6, J2)} job2 {est(J2, 999)}", file=sys.stderr)
```

```python
import sys, re, struct, math

KN = "standalone__mha_softmax__near_ridge_kernel"

vTID = 0
vQO = 1
vDK, vDV = 2, 3
vKA = [4, 5, 6]
vVA = [7, 8, 9]
vKB = [43, 44, 45]
vVB = [46, 47, 56]
vXW, vXR = 57, 58
vQA = 59
vQR = 61
vDIAG = 0
XBASE = 2 * 16384
vR = 10
vS = 16
vP = 32
vT = 40
vO1 = 64
vQ1 = 160
aO1 = 0
aK = 96
aV = 128
aQ2 = 160
aL = 224
aONE = 248

sQ, sK, sV, sO = 16, 20, 24, 28
sW4K = 32
sTMP = 33
sC = 34
sMASK = 35
sLO, sRNG = 38, 39
sC2 = 36
sFLAG = 40
sSWAP = 42
sXST = 43
sROW = 44
sUNIT = 56

C_SCALE = struct.unpack("<I", struct.pack("<f", math.log2(math.e) / math.sqrt(128.0)))[0]
L_LO = (127 - 40) << 23
L_HI = (127 + 60) << 23

NT1, NT2 = 6, 4
J2 = 16 * NT1
STEPS, ITEMS, FIRST = [], [], []
NITEM = 0


def make_steps(m):
    global NITEM
    st = [(0, t, list(range(NT1))) for t in range(16)]
    X = lambda t: [3] if t % 2 == 0 else []
    st += [(1, t, [0, 1, 2] + X(t)) for t in range(16, 32 - m)]
    st += [(1, t, ([0, 1] + X(t)) if t < 30 else (X(t) + [0, 1])) for t in range(32 - m, 32)]
    st += [(1, t, [2]) for t in range(32 - m, 32)]
    STEPS[:] = st
    ITEMS[:] = []
    FIRST[:] = []
    for n, (job, t, subs) in enumerate(st):
        FIRST.append(len(ITEMS))
        ITEMS.extend((job, t, j, n) for j in subs)
    NITEM = len(ITEMS)
    FIRST.append(NITEM)


def item(i):
    return ITEMS[i][:3]


def first(n):
    return FIRST[n]


def last_item(job, j):
    return max(i for i, x in enumerate(ITEMS) if x[0] == job and x[2] == j)


def first_item(job, j):
    return min(i for i, x in enumerate(ITEMS) if x[0] == job and x[2] == j)


def unit_of(t):
    return t if t < 16 else (t - 10 if t < 26 else t - 26)


def r(cls, lo, n=1):
    return f"{cls}{lo}" if n == 1 else f"{cls}[{lo}:{lo+n-1}]"


ALLV = False
KA = 0
vQT = 240


def Qreg(job, j, ks):
    if job == 0 and ALLV:
        return r("a", 16 * j + 4 * ks, 4)
    return r("v", vQ1 + 16 * j + 4 * ks, 4) if job == 0 else r("a", aQ2 + 16 * j + 4 * ks, 4)


def Obase(job, j):
    if ALLV:
        if job == 0:
            return ("v", vO1 + 32 * j)
        return ("a", 32 * j) if j < KA else ("v", vO1 + 32 * (j - KA))
    if job == 0:
        return ("v", vO1 + 32 * j) if j < 3 else ("a", aO1 + 32 * (j - 3))
    return ("v", vQ1 + 32 * j) if j < 3 else ("v", vO1)


class Gap:
    def __init__(self, mfma, slot, g):
        self.mfma = mfma
        self.slot, self.g = slot, g
        self.s, self.m, self.v = [], [], []
        self.units = 0
        self.pre = []
        self.locked = False
        self.extra = 0

    def free_v(self):
        return 0 if self.locked else min(2 - self.units, 3 - self.units - len(self.s)) + self.extra

    def cycles(self):
        return max(16, 8 + 4 * self.units, 4 + 4 * (self.units + len(self.s)))

    def free_s(self):
        return 0 if self.locked else (3 - self.units - len(self.s) if self.s else 1)


class Gen:
    def __init__(self, opt):
        self.o = dict(ldflag="nt", qflag="nt", stflag="sc1", reflag="", keepflag="", stamps=False, prefetch=True,
                      slow=True, touch=True, b1late=True, space=13, qdelay=11, m2=4, lat=5, d1end=144, qlds=True, scend=93, nsplit=1, vbgap=-1, q2lds=False, rot=0, allv=True, ka=2, pk=True, issue_after=True, b1gap=8, blockgap=4, stsp=8, stnow=0, xdelay=(2, 3, 4),
                      sched="9:U3:4 15:U4:4 21:U5:4 26:U6:8 29:U7:8 32:U8:8 35:q0 39:U9 43:U10 47:q1 51:U11 55:U12 58:q2 62:U13 65:q3 69:U14 72:U15 "
                            "103:U26:12 106:U27:12 110:U28:12 113:U29:12 117:U30:12 120:U31:12",
                      start="K0 Q0 Q1 Q2|V0 Q3|Q4 Q5|K1|V1||U2", b1="K1")
        self.o.update(opt)
        self.gaps = []
        self.idx = {}

    def build_gaps(self):
        M = "v_mfma_f32_16x16x32_bf16"
        for s in range(-1, NITEM + 1):
            if s + 1 < NITEM:
                job, t, j = item(s + 1)
                S = vS + 8 * ((s + 1) & 1)
                for f in range(8):
                    kb, ks = f >> 2, f & 3
                    d = r("v", S + 4 * kb, 4)
                    c = "0" if ks == 0 else d
                    self.add(f"{M} {d}, {r('a', aK+4*f, 4)}, {Qreg(job, j, ks)}, {c}", s, f)
            if s - 1 >= 0:
                job, t, j = item(s - 1)
                P = r("v", vP + 4 * ((s - 1) & 1), 4)
                cls, ob = Obase(job, j)
                z = s - 1 == first_item(job, j)
                for f in range(8):
                    d = r(cls, ob + 4 * f, 4)
                    self.add(f"{M} {d}, {r('a', aV+4*f, 4)}, {P}, {'0' if z else d}", s, 8 + f)
                d = r("a", aL + 4 * j, 4)
                self.add(f"{M} {d}, {r('a', aONE, 4)}, {P}, {'0' if z else d}", s, 16)
        self.add(None, NITEM + 1, 0)

    def add(self, mfma, slot, g):
        self.idx[(slot, g)] = len(self.gaps)
        self.gaps.append(Gap(mfma, slot, g))

    def at(self, slot, g):
        while (slot, g) not in self.idx:
            g += 1
            if g > 16:
                slot, g = slot + 1, 0
        return self.idx[(slot, g)]

    def place(self, text, kind, units, lo, hi=None, what="", force=False):
        n = len(self.gaps) - 1
        k = lo
        while True:
            gp = self.gaps[k]
            if k == n:
                break
            if kind == "s":
                if gp.free_s() >= 1:
                    break
            elif gp.free_v() >= units:
                break
            k += 1
        if hi is not None and k > hi and force:
            cand = [x for x in range(lo, hi + 1) if not self.gaps[x].locked]
            k = min(cand, key=lambda x: (self.gaps[x].cycles(), x))
            gp = self.gaps[k]
        elif hi is not None and k > hi:
            raise Exception(f"deadline miss {what or text}: lo={lo} hi={hi} got {k}")
        if k == n:
            gp.v.append(text)
        elif kind == "s":
            gp.s.append(text)
        else:
            (gp.m if kind == "m" else gp.v).append(text)
            gp.units += units
        return k

    def stream(self, ops, lo, hi=None, what=""):
        k = lo
        prevkind = None
        rank = {"s": 0, "m": 1, "v": 2}
        for text, kind, units, sep in ops:
            start = k + sep
            if prevkind is not None and sep == 0 and rank[kind] < rank[prevkind]:
                start = k + 1
            start = min(start, len(self.gaps) - 1)
            k = self.place(text, kind, units, start, hi, what)
            prevkind = kind
        return k

    def place_softmax(self):
        for i in range(NITEM):
            S = vS + 8 * (i & 1)
            P = vP + 4 * (i & 1)
            lo = self.at(i, 0)
            if i == 0 or i == NITEM - 1:
                ops = []
                for e in range(8):
                    ops.append((f"v_exp_f32 v{S+e}, v{S+e}", "v", 2, 0))
                    if e & 1:
                        ops.append((f"v_cvt_pk_bf16_f32 v{P+e//2}, v{S+e-1}, v{S+e}", "v", 1, 1))
                if i == 0:
                    self.sm0 = [x[0] for x in ops if "exp" in x[0]] + ["s_nop 0"] + [x[0] for x in ops if "cvt" in x[0]]
                else:
                    self.smlast = [x[0] for x in ops]
                continue
            for e in range(8):
                k = self.idx[(i, 2 * e)]
                self.place(f"v_exp_f32 v{S+e}, v{S+e}", "v", 2, k, k)
                if e & 1:
                    k = self.idx[(i, 2 * e + 1)]
                    self.place(f"v_cvt_pk_bf16_f32 v{P+e//2}, v{S+e-1}, v{S+e}", "v", 1, k, k)

    def lds_at(self, t, A, B):
        sl = t % 10
        if t < 16:
            return A[sl // 4], (sl % 4) * 16384
        return (B if t & 1 else A)[sl // 4], (sl & 2) * 16384

    def kread(self, t, f):
        reg, off = self.lds_at(t, vKA, vKB)
        kb, ks = f >> 2, f & 3
        return f"ds_read_b128 {r('a', aK+4*f, 4)}, v{reg} offset:{off + kb*8192 + ks*256}"

    def vread(self, t, f, h):
        reg, off = self.lds_at(t, vVA, vVB)
        u, e = f >> 1, f & 1
        return f"ds_read_b64_tr_b16 {r('a', aV+4*f+2*h, 2)}, v{reg} offset:{off + h*8192 + u*256 + e*8}"

    def place_reads(self):
        self.need = {}
        self.rdpos = {}
        lat = self.o["lat"]
        tasks = []
        for n in range(len(STEPS)):
            t = STEPS[n][1]
            if n > 0:
                s = first(n) - 2
                for f in range(8):
                    tasks.append((self.idx[(s + 1, f)], self.idx[(s, f)], self.kread(t, f), ("K", n)))
            s = first(n)
            for f in range(8):
                for h in range(2):
                    if n == 0:
                        self.v0reads.append(self.vread(t, f, h))
                    else:
                        tasks.append((self.idx[(s + 1, 8 + f)], self.idx[(s, 8 + f)], self.vread(t, f, h), ("V", n)))
        tasks.sort(key=lambda x: x[0])
        for use, lo, txt, tag in tasks:
            if tag == ("K", 1) and self.o["b1late"]:
                lo = max(lo, self.idx[(NT1 - 2, self.o["b1gap"])])
            k = self.place(txt, "m", 1, lo, use - lat, "read", force=True)
            self.need.setdefault(use, []).append(txt)
            self.rdpos.setdefault(tag, []).append(k)

    def dma(self, t, which):
        u = unit_of(t)
        fl = self.o["ldflag"] if t < 16 else self.o["reflag"]
        if t < 6 and self.o.get("keepflag") is not None:
            fl = self.o["keepflag"]
        out = []
        if "k" in which:
            out += [f"buffer_load_dwordx4 v{vDK}, s[{sK}:{sK+3}], s{sUNIT+u} offen offset:{o} {fl} lds ; K{t}" for o in (0, 1024)]
        if "v" in which:
            out += [f"buffer_load_dwordx4 v{vDV}, s[{sV}:{sV+3}], s{sUNIT+u} offen offset:{o} {fl} lds ; V{t}" for o in (2048, 3072)]
        return out

    def m0(self, t):
        return f"s_add_u32 m0, s{sW4K}, {(t % 10) * 16384}"

    def qload(self, job, j):
        return [f"buffer_load_dwordx4 {Qreg(job, j, ks)}, v{vQO}, s[{sQ}:{sQ+3}], s{sROW + job*NT1 + j} offen offset:{ks*64} {self.o['qflag']} ; Q{job}_{j}"
                for ks in range(4)]

    def qdma(self, j):
        return ([f"s_add_u32 m0, s{sW4K}, {(4 + j) * 16384}", "s_nop 0"] +
                [f"buffer_load_dwordx4 v{vQA + (p >> 1)}, s[{sQ}:{sQ+3}], s{sROW + j} offen offset:{p*1024} {self.o['qflag']} lds ; Q0_{j}" for p in range(4)])

    def qread(self, j):
        if not self.o["qlds"]:
            return []
        dst = (lambda ks: r("v", vQT + 4 * ks, 4)) if ALLV else (lambda ks: Qreg(0, j, ks))
        return ([f"ds_read_b128 {dst(ks)}, v{vQR + (j >> 2)} offset:{(j & 3) * 16384 + ks*256}" for ks in range(4)] + ["s_waitcnt lgkmcnt(0)"])

    def scale_v(self, j):
        out = self.qread(j)
        pk = self.o["pk"]
        for k in range(16):
            q = vQT + k if ALLV else vQ1 + 16 * j + k
            a, b = vT + 8 + 2 * (k & 3), vT + 8 + 2 * (k & 3) + 1
            out += [f"v_lshlrev_b32 v{a}, 16, v{q}", f"v_and_b32 v{b}, s{sMASK}, v{q}"]
            if pk:
                out += [f"v_pk_mul_f32 v[{a}:{b}], v[{a}:{b}], s[{sC2}:{sC2+1}]"]
            else:
                out += [f"v_mul_f32 v{a}, s{sC}, v{a}", f"v_mul_f32 v{b}, s{sC}, v{b}"]
            out += [f"v_cvt_pk_bf16_f32 v{q}, v{a}, v{b}"]
            if ALLV:
                out += [f"v_accvgpr_write_b32 a{16*j+k}, v{q}"]
        return out

    def drain_block(self, j):
        cls, ob = Obase(1, j)
        pre = []
        if cls == "a":
            nb = vO1 + 32 * (5 - j)
            pre = [f"v_accvgpr_read_b32 v{nb+q}, a{ob+q}" for q in range(32)]
            ob = nb
        ops = [x[0] for x in self.drain_ops(1, j, home=("v", ob))]
        if not self.o["pk"]:
            return pre + ops
        R = vR + j
        return (pre + [f"v_pk_mul_f32 v[{ob+2*q}:{ob+2*q+1}], v[{ob+2*q}:{ob+2*q+1}], v[{R & ~1}:{(R & ~1)+1}] op_sel:[0,{R & 1}] op_sel_hi:[1,{R & 1}]" for q in range(16)] +
                [x for x in ops if not x.startswith("v_mul")])

    def scale_a(self, j):
        out = []
        for k in range(16):
            q = aQ2 + 16 * j + k
            a, b = vT, vT + 1
            out += [f"v_accvgpr_read_b32 v{b}, a{q}", f"v_lshlrev_b32 v{a}, 16, v{b}", f"v_and_b32 v{b}, s{sMASK}, v{b}",
                    f"v_mul_f32 v{a}, s{sC}, v{a}", f"v_mul_f32 v{b}, s{sC}, v{b}",
                    f"v_cvt_pk_bf16_f32 v{a}, v{a}, v{b}", f"v_accvgpr_write_b32 a{q}, v{a}"]
        return [(x, "v", 1, 0) for x in out]

    def lsum_ops(self, j):
        R = vR + j
        t = vT + 2
        return [(f"v_accvgpr_read_b32 v{R}, a{aL+4*j}", "v", 1, 0),
                (f"v_subrev_u32 v{t}, s{sLO}, v{R}", "v", 1, 0),
                (f"v_cmp_lt_u32 vcc, s{sRNG}, v{t}", "v", 1, 0),
                (f"v_rcp_f32 v{R}, v{R}", "v", 2, 0),
                (f"s_or_b64 s[{sFLAG}:{sFLAG+1}], s[{sFLAG}:{sFLAG+1}], vcc", "s", 0, 1)]

    def drain_ops(self, job, j, us=range(4), home=None):
        cls, ob = home or Obase(job, j)
        R = vR + j
        ops = []
        for u in us:
            if cls == "v":
                b = ob + 8 * u
            else:
                b = vT + 8
                for k in (4, 5, 6, 7, 0, 1, 2, 3):
                    ops.append((f"v_accvgpr_read_b32 v{b+k}, a{ob+8*u+k}", "v", 1, 0))
            for k in range(8):
                ops.append((f"v_mul_f32 v{b+k}, v{R}, v{b+k}", "v", 1, 0))
            for k in range(4):
                ops.append((f"v_cvt_pk_bf16_f32 v{b+k}, v{b+2*k}, v{b+2*k+1}", "v", 1, 0))
            ops.append((f"buffer_store_dwordx4 {r('v', b, 4)}, v{vQO}, s[{sO}:{sO+3}], s{sROW + job*NT1 + j} offen offset:{u*64} {self.o['stflag'] if job == 0 else self.o.get('stflag2', self.o['stflag'])} ; O{job}_{j}", "m", 2, 1))
        return ops

    def barrier_gap(self, t):
        return self.at(first(t) - 3, 16)

    def schedule(self):
        o = self.o
        self.v0reads = []
        global ALLV, KA
        ALLV = o["allv"]
        KA = o["ka"]
        make_steps(o["m2"])
        self.build_gaps()
        G = self.gaps
        self.bars = {}
        for t in range(1, 16):
            k = self.barrier_gap(t)
            self.bars[t] = k
            split = t <= o["nsplit"]
            if split:
                kv = self.idx[(first(t), o["vbgap"])] if o["vbgap"] >= 0 else self.idx[(first(t) - 1, 16)]
                G[kv].s += [f"@VMWAIT V{t}", "s_barrier"]
                G[kv].locked = True
            if t == 1 and o["b1late"]:
                continue
            G[k].s += [f"@VMWAIT {'K' if split else 'V'}{t}", "s_barrier"]
            G[k].locked = True
        self.ebar = {}
        for t in range(17, 29, 2):
            k = self.idx[(first(t + 1) - 1, 16)]
            self.ebar[t] = k
            G[k].s += [f"@VMWAIT V{t+4}" if t >= 23 else "s_nop 0", "s_barrier"]
            G[k].locked = True
        self.place_softmax()
        self.place_reads()
        def grp(names):
            out = []
            for nm in names:
                if nm[0] == "Q":
                    out += self.qdma(int(nm[1:])) if o["qlds"] else self.qload(0, int(nm[1:]))
                else:
                    out += [self.m0(int(nm[1:])), "s_nop 0"] + self.dma(int(nm[1:]), {"K": "k", "V": "v", "U": "kv"}[nm[0]])
            return out
        st = [x.split() for x in o["start"].split("|")]
        self.init_groups = grp(st[0])
        ia = o["issue_after"]
        def blk(j):
            a_, b_ = grp(st[j + 1]), self.scale_v(j)
            return [f"@VMWAIT Q0_{j}"] + self.ss({0: 5, 1: 7}.get(j, 7 + j)) + (b_ + a_ if ia else a_ + b_)
        G[self.idx[(-1, 0)]].pre += (blk(0) + ["@VMWAIT K0", "s_barrier"] + self.ss(6) +
                                     [self.kread(0, f) for f in range(8)] + ["s_waitcnt lgkmcnt(0)"])
        G[self.idx[(0, 0)]].pre += blk(1) + ["s_nop 1"]
        G[self.idx[(1, 0)]].pre += self.sm0 + blk(2) + ["@VMWAIT V0", "s_barrier"] + self.ss(8) + self.v0reads + ["s_waitcnt lgkmcnt(0)"]
        for j in range(3, NT1):
            G[self.idx[(j - 1, 0)]].pre += blk(j) + ["s_nop 1"]
        if o["b1late"]:
            G[self.idx[(NT1 - 2, o["b1gap"])]].pre += ["@VMWAIT K1", "s_barrier"] + self.ss(13)
        self.insert_lgkm_waits()
        k = 0
        order = []
        first_issue = []
        if o["q2lds"]:
            self.place(f"v_subrev_u32 v{vQR+1}, 0x8000, v{vQR}", "v", 1, self.idx[(NT1, 0)])
        for ent in o["sched"].split():
            p = ent.split(":")
            sl, gname = float(p[0]), p[1]
            sp = int(p[2]) if len(p) > 2 else o["space"]
            lo = max(k + 1, self.at(int(sl), int(round((sl - int(sl)) * 17))))
            t = int(gname[1:])
            if gname[0] == "q" and o["q2lds"]:
                lo = max(lo, self.bars[3 + t] + 1)
                ops = [(f"s_add_u32 m0, s{sW4K}, {(2 + t) * 16384}", "s", 0, 0)]
                ops += [(f"buffer_load_dwordx4 v{vQA + (p_ >> 1)}, s[{sQ}:{sQ+3}], s{sROW + NT1 + t} offen offset:{p_*1024} {o['qflag']} lds ; Q1_{t}", "m", 2, sp if p_ else 1) for p_ in range(4)]
            elif gname[0] == "q":
                ops = [(x, "m", 2, sp) for x in self.qload(1, t)]
                ops[0] = ops[0][:3] + (0,)
            else:
                if t >= 26:
                    lo = max(lo, self.ebar[(t - 10) | 1] + 1)
                elif t >= 10:
                    lo = max(lo, self.bars[t - 9] + 1)
                ops = [(self.m0(t), "s", 0, 0)] + [(x, "m", 2, sp) for x in self.dma(t, {"U": "kv", "K": "k", "V": "v"}[gname[0]])]
                ops[1] = ops[1][:3] + (1,)
            k = self.stream(ops[:2], lo, what=gname)
            first_issue.append((gname, k))
            k = self.stream(ops[2:], k, what=gname)
            order.append((gname, k))
        self.order = order
        q2bar = {}
        for n, (gname, kk) in enumerate(order):
            if gname[0] == "q":
                t = int(gname[1:])
                kq = self.place(f"@VMWAIT Q1_{t}", "s", 0, kk + int(o["qdelay"] * 17))
                if o["q2lds"]:
                    rd = [f"ds_read_b128 {Qreg(1, t, ks)}, v{vQR + (1 if t < 2 else 0)} offset:{(t & 1) * 16384 + ks*256}" for ks in range(4)]
                    kq = self.stream([(x, "m", 1, 0) for x in rd], kq)
                    kq += 8
                    self.need.setdefault(kq + 1, []).extend(rd)
                    nxt = dict(first_issue)[f"U{12 + t}"]
                    assert kq < nxt, ("staged Q chunk overwritten", t, kq, nxt)
                q2bar[t] = kq
        for gname, kk in order:
            if gname[0] == "U":
                t = int(gname[1:])
                assert kk < (self.bars[t] if t < 16 else self.ebar[(t | 1) - 4]), (gname, "issued after its barrier")
        for tag, regs in (("K", vKA), ("V", vVA)):
            self.stream([(f"v_add_u32 v{x}, s{sSWAP}, v{x}", "v", 1, 0) for x in regs], max(self.rdpos[(tag, 15)]), min(self.rdpos[(tag, 16)]) - 1, "swap")
        import copy
        hi = self.idx[(o["scend"], 0)]
        nsx = 0
        while True:
            save = copy.deepcopy(self.gaps)
            G = self.gaps
            cand = [x for x in range(q2bar[0], hi) if not G[x].locked]
            for q in range(nsx):
                G[cand[(q * len(cand)) // nsx]].extra += 1
            k = 0
            try:
                for n in range(NT2):
                    k = self.stream(self.scale_a(n), max(k, q2bar[n] + 1), hi, f"scale{n}")
                break
            except Exception as e:
                if not str(e).startswith("deadline"):
                    raise
                self.gaps = save
                nsx += 8
        for gp in G:
            gp.extra = 0
        self.scale_end = k
        lend = {}
        k = 0
        for j in range(NT1):
            fin = self.idx[(first(15) + j + 1, 16)]
            hi = self.idx[(first(16) + j + 1, 16)] - 2 if j < NT2 else None
            k = self.stream(self.lsum_ops(j)[:1], max(k, fin + 5), hi, "lsum")
            lend[j] = k
        import copy
        lo_x, hi_x = self.idx[(J2 - 4, 0)], self.idx[(o["d1end"], 0)]
        mid_x = self.idx[(J2 + 4, 8)]
        cands = [[x for x in range(lo_x, mid_x) if not G[x].locked], [x for x in range(mid_x, hi_x) if not G[x].locked]]
        nxs = [0, 0]
        while True:
            save = copy.deepcopy(self.gaps)
            G = self.gaps
            for cand, nx in zip(cands, nxs):
                for q in range(nx):
                    G[cand[(q * len(cand)) // nx]].extra += 1
            k = 0
            try:
                for j in range(NT1):
                    hi = self.idx[(first_item(1, 3) + 1, 8)] - 2 if j == 0 else hi_x
                    if ALLV:
                        hi = self.idx[(first_item(1, j + KA) + 1, 8)] - 1 if j + KA < NT2 else hi_x
                    k = self.stream(self.lsum_ops(j)[1:], max(k, lend[j]), hi, f"lrest{j}")
                    k = self.stream(self.drain_ops(0, j), k, hi, f"drain{j}")
                break
            except Exception as e:
                if not str(e).startswith("deadline"):
                    raise
                self.gaps = save
                nxs[1 if hi == hi_x else 0] += 2
        nx = tuple(nxs)
        for gp in G:
            gp.extra = 0
        self.nx = nx
        self.drain1_end = k
        lastg = self.idx[(NITEM, 8)]
        rest = []
        kcur = self.at(NITEM - 1, 0)
        for x in self.smlast:
            un, sep = (2, 0) if "exp" in x else (1, 1)
            if not rest:
                kt = kcur + sep
                while kt < lastg and G[kt].free_v() < un:
                    kt += 1
                if kt < lastg:
                    self.place(x, "v", un, kt, kt)
                    kcur = kt
                    continue
            rest.append(x)
        G[lastg].pre += [x for x in rest if "exp" in x] + ["s_nop 0"] + [x for x in rest if "cvt" in x] + ["s_nop 1"]
        txt = lambda ops: [x[0] for x in ops]
        def blockat(i, g):
            k = self.at(min(i, NITEM + 1), g if i <= NITEM else 0)
            lst = G[k].pre if G[k].mfma else G[k].v
            if i >= NITEM - 1:
                lst.append("s_nop 7")
            return lst
        pend = []
        def gapof(i, g):
            return self.at(min(i, NITEM + 1), g if i <= NITEM else 0)
        for j in range(3):
            li = last_item(1, j)
            code = txt(self.lsum_ops(j)) + self.drain_block(j)
            if li == NITEM - 1:
                G[-1].v += ["s_nop 7"] + code
            else:
                first_st = o["stnow"]
                keep, nst = [], 0
                for x in code:
                    if x.startswith("buffer_store"):
                        nst += 1
                        if nst > first_st:
                            pend.append((gapof(li + 2, o["blockgap"]), x))
                            continue
                    keep.append(x)
                blockat(li + 2, o["blockgap"]).extend(keep)
        li = last_item(1, 3)
        ob = Obase(1, 3)[1]
        R = vR + 3
        t = vT + 1
        def two(name, lo_code, hi_code):
            return ([f"s_cmp_lg_u32 s{sSWAP}, 0", f"s_cbranch_scc1 L_{name}_hi"] + lo_code + [f"s_branch L_{name}_end", f"L_{name}_hi:"] +
                    ["~" + x for x in hi_code] + [f"L_{name}_end:"])
        send = lambda b: [f"ds_write_b128 v{vXW}, {r('v', b+4*q, 4)} offset:{q*1024}" for q in range(4)]
        recv = lambda b: [f"ds_read_b128 {r('v', b+4*q, 4)}, v{vXR} offset:{q*1024}" for q in range(4)]
        am = [f"v_add_f32 v{ob+q}, v{ob+q}, v{ob+16+q}" for q in range(16)] + [f"v_mul_f32 v{ob+q}, v{R}, v{ob+q}" for q in range(16)]
        if o["pk"]:
            am = ([f"v_pk_add_f32 v[{ob+q}:{ob+q+1}], v[{ob+q}:{ob+q+1}], v[{ob+16+q}:{ob+17+q}]" for q in range(0, 16, 2)] +
                  [f"v_pk_mul_f32 v[{ob+q}:{ob+q+1}], v[{ob+q}:{ob+q+1}], v[{R & ~1}:{(R & ~1)+1}] op_sel:[0,{R & 1}] op_sel_hi:[1,{R & 1}]" for q in range(0, 16, 2)])
        fin = (am +
               [f"v_cvt_pk_bf16_f32 v{ob+q}, v{ob+2*q}, v{ob+2*q+1}" for q in range(8)])
        d0, d1, d2 = o["xdelay"]
        blockat(li + d0, o["blockgap"]).extend([f"ds_write_b128 v{vXW}, {r('a', aL+12, 4)} offset:4096"] + two("snd", send(ob + 16), send(ob)))
        blockat(li + d1, o["blockgap"]).extend(["@LGKM ds_write", "s_barrier", f"ds_read_b32 v{t}, v{vXR} offset:4096"] + two("rcv", recv(ob + 16), recv(ob)))
        lo_ = txt(self.lsum_ops(3))
        blockat(li + d2, o["blockgap"]).extend(["@LGKM rcv", lo_[0], f"v_add_f32 v{R}, v{R}, v{t}"] + lo_[1:] + fin)
        fl2 = o.get("stflag2", o["stflag"])
        for q in range(2):
            pend.append((gapof(li + d2, o["blockgap"]), f"buffer_store_dwordx4 {r('v', ob+4*q, 4)}, v{vQO}, s[{sO}:{sO+3}], s{sXST} offen offset:{q*64} {fl2} ; O1_3"))
        pend.sort(key=lambda x: x[0])
        k = 0
        tailst = []
        for lo, x in pend:
            k = max(k, lo)
            while k < len(G) - 1 and G[k].locked:
                k += 1
            if k >= len(G) - 1:
                tailst.append(x)
            else:
                G[k].m.append(x)
                G[k].units += 2
            k += o["stsp"]
        G[-1].v[0:0] = tailst
        self.insert_lgkm_waits(final=True)

    def insert_lgkm_waits(self, final=False):
        G = self.gaps
        issued = []
        done = 0
        for k, gp in enumerate(G):
            gp.s = [x for x in gp.s if not x.startswith("s_waitcnt lgkmcnt")]
            lists = [gp.pre] if gp.mfma else [gp.pre, gp.v]
            for lst in lists:
                for n, x in enumerate(lst):
                    if x.startswith("ds_"):
                        issued.append(x)
                    elif x.startswith("s_waitcnt lgkmcnt(0)"):
                        done = len(issued)
                    elif x.startswith("@LGKM"):
                        key = "ds_write" if "write" in x else f", v{vXR} "
                        pos = max(q for q, y in enumerate(issued) if key in y)
                        lst[n] = f"s_waitcnt lgkmcnt({min(15, len(issued) - 1 - pos)}) ; xchg"
                        done = max(done, pos + 1)
            nd = self.need.get(k + 1, [])
            if nd:
                nxt = [x for x in G[k + 1].pre if x.startswith("ds_")]
                pos = max(len(issued) - 1 - issued[::-1].index(x) for x in nd)
                if pos >= done:
                    n = min(15, len(issued) - 1 - pos)
                    gp.s.insert(0, f"s_waitcnt lgkmcnt({n})")
                    done = len(issued) - n
            for x in gp.m:
                if x.startswith("ds_"):
                    issued.append(x)

    def prologue(self):
        o = self.o
        L = []
        a = L.append
        if o["stamps"]:
            a("s_memrealtime s[90:91]"); a("s_memtime s[92:93]")
        a("s_cmp_ge_u32 s2, 256")
        a("s_cbranch_scc1 L_exit")
        a("s_load_dwordx8 s[4:11], s[0:1], 0")
        if o["stamps"]:
            a("s_load_dwordx4 s[12:15], s[0:1], 32")
        a(f"v_lshrrev_b32 v10, 6, v0              ; wave")
        a(f"v_and_b32 v11, 63, v0                 ; lane")
        a(f"v_readfirstlane_b32 s{sTMP}, v10")
        a(f"v_and_b32 v12, 15, v0                 ; i")
        a(f"v_lshrrev_b32 v13, 4, v11             ; g")
        a(f"v_and_b32 v14, 3, v0                  ; lane&3")
        a(f"v_bfe_u32 v15, v0, 2, 2               ; (lane>>2)&3")
        a(f"s_lshl_b32 s{sW4K}, s{sTMP}, 12")
        a(f"v_lshlrev_b32 v{vQO}, 8, v12")
        a(f"v_lshl_add_u32 v{vQO}, v13, 4, v{vQO}")
        a(f"v_lshl_add_u32 v{vQO}, v10, 12, v{vQO}")
        a(f"v_lshlrev_b32 v16, 1, v10")
        a(f"v_and_b32 v16, 2, v16")
        a(f"v_xor_b32 v16, v16, v15")
        a(f"v_lshlrev_b32 v17, 11, v10")
        a(f"v_lshl_add_u32 v17, v13, 6, v17       ; w*2048 + g*64")
        a(f"v_lshl_add_u32 v{vDK}, v14, 8, v17")
        a(f"v_lshl_add_u32 v{vDK}, v16, 4, v{vDK}")
        a(f"v_lshl_add_u32 v{vDV}, v15, 8, v17")
        a(f"v_lshl_add_u32 v{vDV}, v14, 4, v{vDV}")
        if o["qlds"]:
            a(f"v_lshlrev_b32 v16, 12, v10")
            a(f"v_lshl_add_u32 v16, v13, 6, v16")
            a(f"v_lshl_add_u32 v16, v14, 8, v16")
            a(f"v_lshl_add_u32 v{vQA}, v15, 4, v16")
            a(f"v_xor_b32 v{vQA+1}, 32, v{vQA}")
        a(f"s_mul_i32 s{sTMP}, s2, 155648")
        a(f"s_lshl_b32 s3, s2, 17")
        a(f"s_mov_b32 s{sK+2}, 131072")
        a(f"s_mov_b32 s{sK+3}, 0x20000")
        a(f"s_mov_b32 s{sQ+2}, 155648")
        a(f"s_mov_b32 s{sQ+3}, 0x20000")
        a(f"s_mov_b32 s{sV+2}, {131072+2048}")
        a(f"s_mov_b32 s{sV+3}, 0x20000")
        a(f"s_mov_b32 s{sO+2}, 155648")
        a(f"s_mov_b32 s{sO+3}, 0x20000")
        rot = o["rot"]
        if rot:
            a(f"s_mul_i32 s75, s2, {rot * 8192}")
            if o.get("rotsh"):
                a(f"s_lshr_b32 s74, s2, {o['rotsh']}")
                a(f"s_mul_i32 s74, s74, 8192")
                a(f"s_add_u32 s75, s75, s74")
            for u in range(16):
                a(f"s_and_b32 s{sUNIT+u}, s75, 0x1e000")
                if u < 15:
                    a(f"s_add_u32 s75, s75, 8192")
        else:
            for u in range(16):
                a(f"s_mov_b32 s{sUNIT+u}, {u*8192}")
        for j in range(NT1 + NT2):
            a(f"s_mov_b32 s{sROW+j}, {j*16384}")
        if o["prefetch"]:
            a("s_getpc_b64 s[72:73]")
            a("L_pc:")
            if o["touch"]:
                a("s_add_u32 s72, s72, L_main-L_pc")
                a("s_addc_u32 s73, s73, 0")
            a("s_lshr_b32 s74, s2, 3")
            a("s_and_b32 s74, s74, 31")
            a("s_lshl_b32 s74, s74, 11")
            a("v_lshlrev_b32 v18, 9, v10")
            a("v_lshl_add_u32 v18, v14, 7, v18")
            a("v_add_u32 v18, s74, v18")
            a("v_min_u32 v18, L_codeend-%s-4, v18" % ("L_main" if o["touch"] else "L_pc"))
            a(f"global_load_dword v{vT+23}, v18, s[72:73] ; PF")
        a("s_waitcnt lgkmcnt(0)")
        L += self.ss(0)
        a(f"s_add_u32 s{sK}, s6, s3")
        a(f"s_addc_u32 s{sK+1}, s7, 0")
        a(f"s_add_u32 s{sQ}, s4, s{sTMP}")
        a(f"s_addc_u32 s{sQ+1}, s5, 0")
        a(f"s_add_u32 s{sV}, s8, s3")
        a(f"s_addc_u32 s{sV+1}, s9, 0")
        a(f"s_sub_u32 s{sV}, s{sV}, 2048")
        a(f"s_subb_u32 s{sV+1}, s{sV+1}, 0")
        L += self.init_groups + self.ss(1)
        a(f"s_add_u32 s{sO}, s10, s{sTMP}")
        a(f"s_addc_u32 s{sO+1}, s11, 0")
        for nm in o.get("tlb", ""):
            srd = {"o": sO, "q": sQ, "k": sK, "v": sV}[nm]
            a(f"v_and_b32 v19, 15, v0")
            a(f"v_lshl_add_u32 v19, v10, 4, v19")
            a(f"v_mul_u32_u24 v19, {o.get('tlbstep', 4096)}, v19")
            a(f"v_add_u32 v19, 2048, v19")
            a(f"buffer_load_dword v{vT+15}, v19, s[{srd}:{srd+3}], 0 offen ; TLB")
        a(f"v_lshrrev_b32 v16, 1, v15")
        a(f"v_and_b32 v17, 1, v15")
        a(f"v_lshlrev_b32 v18, 12, v16")
        a(f"v_lshl_add_u32 v18, v17, 10, v18")
        a(f"v_and_b32 v16, 2, v15")
        a(f"v_xor_b32 v16, v16, v13")
        a(f"v_lshl_add_u32 v18, v16, 6, v18")
        a(f"v_lshl_add_u32 v{vKA[0]}, v14, 4, v18")
        a(f"v_add_u32 v{vKA[1]}, 0x10000, v{vKA[0]}")
        a(f"v_add_u32 v{vKA[2]}, 0x20000, v{vKA[0]}")
        if o["qlds"]:
            a(f"v_lshlrev_b32 v17, 12, v10")
            a(f"v_lshl_add_u32 v17, v15, 10, v17")
            a(f"v_lshl_add_u32 v17, v16, 6, v17")
            a(f"v_lshl_add_u32 v17, v14, 4, v17")
            a(f"v_add_u32 v{vQR}, 0x10000, v17")
            a(f"v_add_u32 v{vQR+1}, 0x20000, v17")
        a(f"v_lshrrev_b32 v16, 1, v13")
        a(f"v_and_b32 v17, 1, v13")
        a(f"v_lshlrev_b32 v18, 12, v16")
        a(f"v_lshl_add_u32 v18, v17, 10, v18")
        a(f"v_lshl_add_u32 v18, v12, 4, v18      ; (i>>2)*64+(i&3)*16 = i*16")
        a(f"v_add_u32 v{vVA[0]}, 2048, v18")
        a(f"v_add_u32 v{vVA[1]}, 0x10000, v{vVA[0]}")
        a(f"v_add_u32 v{vVA[2]}, 0x20000, v{vVA[0]}")
        a(f"s_and_b32 s{sSWAP}, s{sW4K}, 8192")
        a(f"s_sub_u32 s{sROW+9}, s{sROW+9}, s{sSWAP}")
        a(f"s_lshr_b32 s{sXST}, s{sSWAP}, 6")
        a(f"s_add_u32 s{sXST}, s{sXST}, s{sROW+9}")
        a(f"s_lshl_b32 s{sSWAP}, s{sSWAP}, 1")
        a(f"s_sub_u32 s3, 16384, s{sSWAP}")
        for x, y in zip(vKB + vVB, vKA + vVA):
            a(f"v_add_u32 v{x}, s3, v{y}")
        a(f"v_mul_u32_u24 v16, 5120, v10")
        a(f"v_lshl_add_u32 v16, v11, 4, v16")
        a(f"v_add_u32 v{vXW}, {XBASE}, v16")
        a(f"v_xor_b32 v16, 2, v10")
        a(f"v_mul_u32_u24 v16, 5120, v16")
        a(f"v_lshl_add_u32 v16, v11, 4, v16")
        a(f"v_add_u32 v{vXR}, {XBASE}, v16")
        a(f"v_cmp_eq_u32 vcc, 0, v14")
        a(f"v_mov_b32 v17, 0x3f803f80")
        a(f"s_nop 0")
        a(f"v_cndmask_b32 v16, 0, v17, vcc")
        for k in range(4):
            a(f"v_accvgpr_write_b32 a{aONE+k}, v16")
        a(f"s_mov_b32 s{sC}, {C_SCALE:#x}")
        a(f"s_mov_b32 s{sC2}, s{sC}")
        a(f"s_mov_b32 s{sC2+1}, s{sC}")
        a(f"s_mov_b32 s{sMASK}, 0xffff0000")
        a(f"s_mov_b32 s{sLO}, {L_LO:#x}")
        a(f"s_mov_b32 s{sRNG}, {L_HI-L_LO:#x}")
        a(f"s_mov_b64 s[{sFLAG}:{sFLAG+1}], 0")
        return L

    def ss(self, n):
        return ["s_memtime s[74:75]", "s_waitcnt lgkmcnt(0)", f"v_writelane_b32 v0, s74, {n}"] if self.o.get("startstamps") else []

    def linear(self):
        L = self.prologue() + self.ss(2) + (["@VMWAIT PF"] if self.o["prefetch"] else []) + self.ss(3) + ["@MAIN"] + self.ss(4)
        st = self.o["stamps"]
        tl = {self.idx[(first(t), 0)]: t for t in range(32)} if self.o.get("timeline") else {}
        if self.o.get("timeline") == "end":
            tl = {self.at(NITEM - 33 + t, 0): t for t in range(32)}
        lt = {}
        if self.o.get("light"):
            pts = [(4, 0), (5, 0), (6, 8)] + [(first(t) + 2, 0) for t in range(1, 16)] + [(first(t) + 1, 15) for t in range(16, 28, 2)]
            pts += [(first(28) + 1, 15), (first(30) + 1, 15), (first(31), 0), (first(32), 0), (first(33), 0), (first(34), 0), (first(35), 8), (NITEM, 8)]
            lt = {self.idx[p]: n for n, p in enumerate(pts)}
            self.lt_pts = [self.idx[p] for p in pts]
            prs = [74, 76, 78, 98]
        tl_end = self.idx[(NITEM - 1, 8)]
        for k, gp in enumerate(self.gaps):
            if k in tl:
                if tl[k] > 0:
                    L += ["s_waitcnt lgkmcnt(0)", f"v_writelane_b32 v0, s74, {tl[k]-1}", f"v_writelane_b32 v0, s72, {tl[k]-1+32}"]
                L += ["s_memtime s[74:75]", "s_memrealtime s[72:73]"] if tl[k] > 0 else []
                if tl[k] == 0:
                    gp.pre = gp.pre + ["s_memtime s[74:75]", "s_memrealtime s[72:73]"]
            if tl and k == tl_end:
                L += ["s_waitcnt lgkmcnt(0)", f"v_writelane_b32 v0, s74, 31", f"v_writelane_b32 v0, s72, 63"]
            if st and k == self.idx[(4, 0)]:
                L += gp.pre + ["s_memrealtime s[84:85]", "s_memtime s[86:87]"]
            elif st and k == self.idx[(J2, 0)]:
                L += gp.pre + ["s_memrealtime s[82:83]"]
            elif st and gp.mfma is None:
                L += gp.pre + ["s_memrealtime s[88:89]", "s_memtime s[80:81]"]
            else:
                L += gp.pre
            if gp.mfma:
                if gp.g == 0 or (gp.slot >= NITEM - 1 and gp.g == 8):
                    L.append(f"; ---- slot {gp.slot}")
                L.append(gp.mfma)
            if k in lt:
                n = lt[k]
                L += [f"s_memtime s[{prs[n % 4]}:{prs[n % 4] + 1}]"]
                L += gp.s + gp.m + gp.v
                if n >= 3:
                    L += [f"v_writelane_b32 v0, s{prs[(n - 3) % 4]}, {n - 3}"]
                continue
            if lt and gp.mfma is None:
                n = len(lt)
                L += ["s_waitcnt lgkmcnt(0)"] + [f"v_writelane_b32 v0, s{prs[q % 4]}, {q}" for q in range(n - 3, n)]
            L += gp.s + gp.m + gp.v
        ab = self.o.get("ablate", "")
        if ab:
            cut = L.index("; ---- slot 6")
            def keep(x):
                if "L" in ab and x.startswith(("ds_read_b128 a[9", "ds_read_b128 a[1", "ds_read_b64_tr")): return False
                if "K" in ab and x.startswith(("ds_read_b128 a[9", "ds_read_b128 a[1")): return False
                if "E" in ab and x.startswith("v_exp"): return False
                if "C" in ab and x.startswith("v_cvt_pk_bf16_f32 v3"): return False
                if "S" in ab and x.startswith("buffer_store"): return False
                return True
            def mod(x):
                if "D" in ab and x.startswith("buffer_load"): return "s_nop 0 ; " + x.split(";")[-1]
                if "R" in ab and x.startswith("v_mfma") and f"a[{aONE}:" in x: return "s_nop 3"
                if "Z" in ab and x.startswith("v_mfma") and f"a[{aONE}:" in x: return x.replace(f"a[{aONE}:{aONE+3}]", "a[252:255]")
                return x
            L = L[:cut] + [mod(x) for x in L[cut:] if keep(x) and not ("D" in ab and x.startswith("@VMWAIT"))]
        out = []
        vm = []
        done = 0
        self.maxout = 0
        for x in L:
            if x.startswith("~"):
                out.append(x[1:])
                continue
            if x.startswith("@VMWAIT"):
                tag = x.split()[1]
                pos = max(n for n, y in enumerate(vm) if y == tag)
                n = len(vm) - 1 - pos
                assert n <= 63, (tag, n)
                if pos >= done:
                    done = pos + 1
                out.append(f"s_waitcnt vmcnt({n})")
                continue
            if x.startswith(("buffer_", "global_")) and not x.startswith("buffer_wbl2"):
                vm.append(x.split(";")[-1].strip())
                self.maxout = max(self.maxout, len(vm) - done)
            out.append(x)
        return out

    def slow_path(self):
        L = []
        a = L.append
        M = "v_mfma_f32_16x16x32_bf16"
        a("L_slow:")
        a("s_waitcnt vmcnt(0)")
        a("v_mbcnt_lo_u32_b32 v11, -1, 0")
        a("v_mbcnt_hi_u32_b32 v11, -1, v11")
        a("v_and_b32 v12, 15, v11")
        a("v_lshrrev_b32 v13, 4, v11")
        a("v_lshlrev_b32 v2, 8, v12")
        a("v_lshl_add_u32 v2, v13, 4, v2           ; K offset")
        a("v_lshlrev_b32 v3, 1, v12")
        a("v_lshl_add_u32 v3, v13, 10, v3")
        a("v_add_u32 v3, 2048, v3")
        a("v_lshlrev_b32 v4, 8, v12")
        a("v_lshl_add_u32 v4, v13, 3, v4")
        a(f"v_add_u32 v4, s{sW4K}, v4")
        a("s_mov_b32 s76, 0")
        a("L_slow_sub:")
        for ks in range(4):
            a(f"buffer_load_dwordx4 v[{64+4*ks}:{67+4*ks}], v{vQO}, s[{sQ}:{sQ+3}], s76 offen offset:{ks*64}")
        a("v_mov_b32 v5, 0xff800000")
        a("s_mov_b32 s77, 0")
        a("L_slow_max:")
        for pas in range(2):
            if pas == 1:
                a("v_mov_b32 v6, v5")
                a("s_nop 1")
                a("v_permlane32_swap_b32 v5, v6")
                a("s_nop 1")
                a("v_max_f32 v5, v5, v6")
                a("v_mov_b32 v6, v5")
                a("s_nop 1")
                a("v_permlane16_swap_b32 v5, v6")
                a("s_nop 1")
                a("v_max_f32 v5, v5, v6")
                a(f"v_mul_f32 v5, s{sC}, v5")
                a("v_mov_b32 v7, 0")
                for k in range(32):
                    a(f"v_mov_b32 v{96+k}, 0")
                a("s_mov_b32 s77, 0")
                a("L_slow_pv:")
            a("s_add_u32 s78, s77, 4096")
            for f in range(8):
                a(f"buffer_load_dwordx4 v[{128+4*f}:{131+4*f}], v2, s[{sK}:{sK+3}], s{77 + (f >> 2)} offen offset:{(f & 3)*64}")
            if pas == 1:
                for f in range(8):
                    for jj in range(8):
                        a(f"buffer_load_ushort v{160+8*f+jj}, v3, s[{sV}:{sV+3}], s{77 + (jj >> 2)} offen offset:{(jj & 3)*256 + f*32}")
                    if f == 3:
                        a("s_waitcnt vmcnt(16)")
            a("s_waitcnt vmcnt(0)")
            for f in range(8):
                kb, ks = f >> 2, f & 3
                d = f"v[{16+4*kb}:{19+4*kb}]"
                a(f"{M} {d}, v[{128+4*f}:{131+4*f}], v[{64+4*ks}:{67+4*ks}], {'0' if ks == 0 else d}")
            a("s_nop 7")
            a("s_nop 1")
            if pas == 0:
                for k in range(0, 8, 2):
                    a(f"v_max3_f32 v5, v5, v{16+k}, v{17+k}")
                a("s_add_u32 s77, s77, 8192")
                a("s_cmp_lt_u32 s77, 131072")
                a("s_cbranch_scc1 L_slow_max")
            else:
                for k in range(8):
                    a(f"v_fma_f32 v{16+k}, v{16+k}, s{sC}, -v5")
                for k in range(8):
                    a(f"v_exp_f32 v{16+k}, v{16+k}")
                a("s_nop 0")
                for k in range(8):
                    a(f"v_add_f32 v7, v7, v{16+k}")
                for k in range(4):
                    a(f"v_cvt_pk_bf16_f32 v{32+k}, v{16+2*k}, v{17+2*k}")
                for k in range(32):
                    a(f"v_lshl_or_b32 v{224+k}, v{161+2*k}, 16, v{160+2*k}")
                a("s_nop 1")
                for f in range(8):
                    d = f"v[{96+4*f}:{99+4*f}]"
                    a(f"{M} {d}, v[{224+4*f}:{227+4*f}], v[32:35], {d}")
                a("s_add_u32 s77, s77, 8192")
                a("s_cmp_lt_u32 s77, 131072")
                a("s_cbranch_scc1 L_slow_pv")
        a("v_mov_b32 v6, v7")
        a("s_nop 1")
        a("v_permlane32_swap_b32 v7, v6")
        a("s_nop 1")
        a("v_add_f32 v7, v7, v6")
        a("v_mov_b32 v6, v7")
        a("s_nop 1")
        a("v_permlane16_swap_b32 v7, v6")
        a("s_nop 1")
        a("v_add_f32 v7, v7, v6")
        a("v_rcp_f32 v7, v7")
        a("s_nop 7")
        for k in range(32):
            a(f"v_mul_f32 v{96+k}, v7, v{96+k}")
        for k in range(16):
            a(f"v_cvt_pk_bf16_f32 v{128+k}, v{96+2*k}, v{97+2*k}")
        for f in range(8):
            a(f"buffer_store_dwordx2 v[{128+2*f}:{129+2*f}], v4, s[{sO}:{sO+3}], s76 offen offset:{f*32}")
        a("s_waitcnt vmcnt(0)")
        a("s_add_u32 s76, s76, 16384")
        a(f"s_cmp_lt_u32 s76, {16384*(NT1+NT2)}")
        a("s_cbranch_scc1 L_slow_sub")
        return L

    def stamp_out(self):
        if self.o["stamps"] == "dbg":
            L = ["s_waitcnt vmcnt(0) lgkmcnt(0)", "s_memrealtime s[94:95]", "s_memtime s[96:97]", "s_waitcnt lgkmcnt(0)",
                 "s_mov_b32 s76, s12", "s_mov_b32 s77, s13", "s_mov_b32 s78, 256", "s_mov_b32 s79, 0x20000",
                 "v_and_b32 v2, 63, v0", "v_lshlrev_b32 v1, 2, v2", "v_mov_b32 v4, 0"]
            for n, sr in enumerate([90, 84, 82, 88, 94]):
                L += [f"s_not_b32 s3, s{sr}", f"v_writelane_b32 v4, s3, {2*n}", f"v_writelane_b32 v4, s{sr}, {2*n+1}"]
            L += ["s_sub_u32 s3, s80, s86", "v_writelane_b32 v4, s3, 10", "s_not_b32 s3, s3", "v_writelane_b32 v4, s3, 12", "s_sub_u32 s3, s96, s92", "v_writelane_b32 v4, s3, 11"]
            L += ["v_cmp_gt_u32 vcc, 16, v2", "s_and_saveexec_b64 s[98:99], vcc", "buffer_atomic_umax v4, v1, s[76:79], 0 offen"]
            return L
        L = ["s_waitcnt vmcnt(0) lgkmcnt(0)", "s_memrealtime s[94:95]", "s_memtime s[96:97]", "s_waitcnt lgkmcnt(0)",
             "v_mov_b32 v30, v0", "v_mbcnt_lo_u32_b32 v0, -1, 0", "v_mbcnt_hi_u32_b32 v0, -1, v0", f"s_lshr_b32 s3, s{sW4K}, 6", "v_add_u32 v0, s3, v0",
             "s_mov_b32 s76, s14", "s_mov_b32 s77, s15", "s_mov_b32 s78, 0x1000000", "s_mov_b32 s79, 0x20000",
             "v_lshrrev_b32 v1, 6, v0", "v_lshlrev_b32 v1, 6, v1", "s_lshl_b32 s3, s2, 8", "v_add_u32 v1, s3, v1"]
        for n, s in enumerate([90, 91, 92, 93, 94, 95, 96, 97, 84, 85, 86, 82, 88, 89, 80, 81]):
            L.append(f"v_mov_b32 v{4+n}, s{s}")
        if self.o.get("timeline") or self.o.get("startstamps") or self.o.get("light"):
            L += ["v_lshlrev_b32 v2, 2, v0", "s_lshl_b32 s3, s2, 10", "s_add_u32 s3, s3, 0x100000", "buffer_store_dword v30, v2, s[76:79], s3 offen"]
        L += ["v_and_b32 v2, 63, v0", "v_cmp_eq_u32 vcc, 0, v2", "s_and_saveexec_b64 s[98:99], vcc"]
        for n in range(4):
            L.append(f"buffer_store_dwordx4 v[{4+4*n}:{7+4*n}], v1, s[76:79], 0 offen offset:{16*n}")
        return L

    def text(self):
        self.schedule()
        body = self.linear()
        if not self.o.get("ablate"):
            verify([x for x in body if x != "@MAIN"])
        tail = [f"s_cmp_lg_u64 s[{sFLAG}:{sFLAG+1}], 0", "s_cbranch_scc1 L_slow"] if self.o["slow"] else []
        if self.o.get("forceslow"):
            tail = ["s_branch L_slow"]
        tail += ["L_done:"]
        if self.o["stamps"]:
            tail += self.stamp_out()
        tail += ["L_exit:", "s_endpgm", "L_codeend:"]
        cut = body.index("@MAIN")
        if self.o["touch"]:
            main, chain = add_markers(body[cut + 1:] + tail)
            body = body[:cut] + chain + ["s_branch L_main", ".p2align 12", "L_main:"] + main
            tail = []
        else:
            body = body[:cut] + body[cut + 1:]
        if self.o["slow"]:
            sp = self.slow_path()
            verify(sp)
            tail += sp + ["s_branch L_done"]
        hdr = open("header.txt").read()
        fmt = lambda x: (x if x.endswith(":") or x.startswith((";", ".")) else "    " + x)
        return (hdr + f""".amdgcn_target "amdgcn-amd-amdhsa--gfx950"
.text
.globl {KN}
.p2align 8
.type {KN},@function
{KN}:
""" + "\n".join(fmt(x) for x in body + tail) + f"""
.section .rodata,"a"
.p2align 6
.amdhsa_kernel {KN}
  .amdhsa_next_free_vgpr 512
  .amdhsa_next_free_sgpr 102
  .amdhsa_accum_offset 256
  .amdhsa_group_segment_fixed_size 0
  .amdhsa_kernarg_size 48
  .amdhsa_user_sgpr_count 2
  .amdhsa_user_sgpr_kernarg_segment_ptr 1
  .amdhsa_system_sgpr_workgroup_id_x 1
.end_amdhsa_kernel
""")


def isize(x):
    x = x.split(";")[0].strip()
    if not x or x.endswith(":") or x.startswith("."):
        return 0
    op, _, rest = x.partition(" ")
    if op.startswith(("v_mfma", "ds_", "buffer_", "global_", "v_accvgpr", "v_cvt_pk", "v_fma", "v_lshl_add", "v_lshl_or", "v_bfe", "v_max3",
                      "v_writelane", "v_mbcnt", "v_pk_", "s_load", "s_mem", "v_add3", "v_mul_lo", "v_perm_")):
        return 8
    if "_dpp" in op or "row_" in rest or "quad_perm" in rest:
        return 8
    if op.startswith(("s_waitcnt", "s_nop", "s_barrier", "s_cbranch", "s_branch", "s_endpgm", "s_setprio", "s_sleep")):
        return 4
    for t in rest.split(","):
        t = t.strip().split()[0] if t.strip() else ""
        if re.fullmatch(r"-?(0x[0-9a-fA-F]+|\d+)", t):
            v = int(t, 0)
            if not -16 <= v <= 64:
                return 8
        elif t.startswith("L_"):
            return 8
    return 4


def add_markers(L, nw=4):
    out, addr, page, marks = [], 0, 1, []
    n = 0
    while n < len(L):
        x = L[n]
        if addr >= page * 4096:
            best, a2 = None, addr
            for m in range(n, len(L)):
                if a2 + 4 > page * 4096 + 64:
                    break
                prev = L[m - 1] if m > n else (out[-1] if out else "")
                if prev.startswith("v_mfma") and not L[m].startswith(("s_", "@")) and isize(L[m]):
                    best = m
                    break
                a2 += isize(L[m])
            if best is None:
                best = n
            for m in range(n, best):
                out.append(L[m]); addr += isize(L[m])
            marks.append(len(out))
            out.append(None); addr += 4
            n = best
            page += 1
            continue
        out.append(x); addr += isize(x); n += 1
    per = (len(marks) + nw - 1) // nw
    res = []
    mi = {p: k for k, p in enumerate(marks)}
    for k, x in enumerate(out):
        if x is None:
            m = mi[k]
            last = (m + 1) % per == 0 or m + 1 == len(marks)
            res += [f"L_m{m}:", f"s_cbranch_execz {'L_back' if last else 'L_m%d' % (m + 1)}"]
        else:
            res.append(x)
    chain = ["s_mov_b64 exec, 0"]
    for w in range(nw):
        if w * per < len(marks):
            chain += [f"s_cmp_eq_u32 s{sW4K}, {w * 4096}", f"s_cbranch_scc1 L_m{w * per}"]
    chain += ["L_back:", "s_mov_b64 exec, -1"]
    return res, chain


def regs(tok):
    tok = tok.strip().lstrip("-")
    m = re.fullmatch(r"([va])(\d+)", tok)
    if m:
        return {(m.group(1), int(m.group(2)))}
    m = re.fullmatch(r"([va])\[(\d+):(\d+)\]", tok)
    if m:
        return {(m.group(1), k) for k in range(int(m.group(2)), int(m.group(3)) + 1)}
    return set()


def parse(x):
    x = x.split(";")[0].strip()
    if not x or x.endswith(":"):
        return None
    op, _, rest = x.partition(" ")
    rest = re.sub(r" op_sel.*", "", rest)
    ops = [t.strip() for t in rest.split(",")]
    last = ops[-1].split()
    if last:
        ops[-1] = last[0]
    d = dict(op=op, w=set(), rd=set(), kind="s", c=set(), ws=1, m0w=False)
    if op == "s_nop":
        d["ws"] = int(ops[0]) + 1
    if op.startswith("s_") and ops and ops[0] == "m0":
        d["m0w"] = True
    if op.startswith("v_mfma"):
        d.update(kind="mfma", w=regs(ops[0]), rd=regs(ops[1]) | regs(ops[2]), c=regs(ops[3]))
    elif op.startswith("v_"):
        d["kind"] = "valu"
        if op.startswith("v_cmp") or op.startswith("v_readfirstlane"):
            d["rd"] = set().union(*[regs(t) for t in ops[1:]])
        elif op.startswith("v_permlane"):
            d["w"] = regs(ops[0]) | regs(ops[1]); d["rd"] = set(d["w"])
        else:
            d["w"] = regs(ops[0]); d["rd"] = set().union(*[regs(t) for t in ops[1:]])
        d["trans"] = op.startswith(("v_exp", "v_rcp"))
    elif op.startswith("ds_write"):
        d.update(kind="ds", rd=regs(ops[0]) | regs(ops[1]))
    elif op.startswith("ds_read"):
        d.update(kind="ds", w=regs(ops[0]), rd=regs(ops[1]))
    elif op.startswith("buffer_store"):
        d.update(kind="store", rd=regs(ops[0]) | regs(ops[1]), data=regs(ops[0]))
    elif op.startswith(("buffer_load", "global_load")):
        if " lds" in x:
            d.update(kind="dma", rd=regs(ops[0]))
        else:
            d.update(kind="load", w=regs(ops[0]), rd=regs(ops[1]))
    return d


def verify(L):
    ins = [(x, parse(x)) for x in L]
    ins = [(x, d) for x, d in ins if d]
    bad = 0
    for n, (x, d) in enumerate(ins):
        dist = 0
        for m in range(n - 1, max(-1, n - 14), -1):
            y, p = ins[m]
            need = 0
            if p["kind"] == "mfma":
                if d["kind"] == "mfma":
                    if p["w"] & d["rd"]:
                        need = 8
                    elif p["w"] & d["c"] and p["w"] != d["c"]:
                        need = 6
                    elif p["w"] & d["w"] and p["w"] != d["w"]:
                        need = 6
                elif p["w"] & (d["rd"] | d["w"]):
                    need = 8
                elif d["kind"] == "valu" and p["c"] & d["w"]:
                    need = 3
            elif p["kind"] == "valu":
                if d["kind"] == "mfma" and p["w"] & (d["rd"] | d["c"]):
                    need = 2
                elif d["kind"] == "valu" and p.get("trans") and not d.get("trans") and p["w"] & d["rd"]:
                    need = 1
                elif d["op"].startswith("v_permlane") and p["w"] & d["rd"]:
                    need = 2
                elif d["op"].startswith("v_readfirstlane") and p["w"] & d["rd"]:
                    need = 1
            elif p["kind"] == "store":
                if p["data"] & d["w"]:
                    need = 2
            elif p["m0w"] and d["kind"] == "dma":
                need = 1
            if dist < need:
                print(f"HAZARD need {need} have {dist}:\n   {y}\n   {x}", file=sys.stderr)
                bad += 1
            dist += p["ws"]
    assert bad == 0


if __name__ == "__main__":
    opt = {}
    out = sys.argv[1]
    for kv in sys.argv[2:]:
        k, v = kv.split("=", 1)
        try:
            v = eval(v)
        except Exception:
            pass
        opt[k] = v
    g = Gen(opt)
    t = g.text()
    open(out, "w").write(t)
    G = g.gaps
    print("   issue ends:", " ".join(f"{n}@{G[k].slot}" for n, k in g.order), file=sys.stderr)
    if opt.get("timeline") == "end":
        print("est per slot:", " ".join(str(sum(x.cycles() + 4 * len([y for y in x.pre if not y.startswith("~")]) for x in G[:-1] if x.slot == sl)) for sl in range(NITEM - 33, NITEM + 1)), file=sys.stderr)
    if opt.get("light"):
        cy = lambda x: x.cycles() + 4 * len([y for y in x.pre if not y.startswith("~")])
        print("est:", " ".join("%4d" % sum(cy(x) for x in G[a:b]) for a, b in zip(g.lt_pts, g.lt_pts[1:])), file=sys.stderr)
    est = lambda a, b: sum(x.cycles() + 4 * len([y for y in x.pre if not y.startswith("~")]) for x in G[:-1] if a <= x.slot < b)
    print(f"{out}: max vm outstanding {g.maxout}, scale ends slot {G[g.scale_end].slot}, drain1 ends at slot {G[g.drain1_end].slot} (overflow {g.nx}), tail instrs {len(G[-1].v)}, "
          f"free units job1 {sum(x.free_v() for x in G if x.slot < J2)}, job2 {sum(max(0, x.free_v()) for x in G[:-1] if x.slot >= J2)}, items {NITEM}, est cycles job1(6..) {est(6, J2)} job2 {est(J2, 999)}", file=sys.stderr)
```
